```python
import torch

def _softmax(x, axis=-1):
    return torch.softmax(x, dim=axis)
def _gelu(x):
    return torch.nn.functional.gelu(x, approximate="tanh")
def _silu(x):
    return torch.nn.functional.silu(x)
def _sigmoid(x):
    return torch.sigmoid(x)
def _layernorm(x, axis=-1, eps=1e-5):
    m = x.mean(dim=axis, keepdim=True)
    v = x.var(dim=axis, keepdim=True, unbiased=False)
    return (x - m) / torch.sqrt(v + eps)
def _scatter_add(tgt, idx, src, axis=0):
    return tgt.clone().index_add_(axis, idx, src)
def _segment_sum(src, seg, n):
    out = torch.zeros((n,) + src.shape[1:], dtype=src.dtype)
    return out.index_add_(0, seg, src)
def _pad(x, pw):
    flat = tuple(v for pair in reversed(pw) for v in pair)
    return torch.nn.functional.pad(x, flat)

kernel_name = 'gated_mix__ssm_conv_s4__dense_activation_mish__prompt'

def setup_inputs():

    _w = (lambda a: (lambda t: t.to(torch.bfloat16) if t.is_floating_point() else t)(torch.as_tensor(a)))
    def _A_setup():
        B, L, D, N = 1, 2048, 576, 128
        A_re = -(lambda _x: torch.exp(torch.as_tensor(_x)))((lambda *s: torch.randn(*s, dtype=torch.bfloat16) * 6.4)(D, N))
        A_im = torch.pi * (lambda *s: torch.randn(*s, dtype=torch.bfloat16) * 0.05)(D, N)
        B_re = (lambda *s: torch.randn(*s, dtype=torch.bfloat16) * 0.1)(D, N)
        B_im = (lambda *s: torch.randn(*s, dtype=torch.bfloat16) * 0.1)(D, N)
        C_re = (lambda *s: torch.randn(*s, dtype=torch.bfloat16) * 0.1)(D, N)
        C_im = (lambda *s: torch.randn(*s, dtype=torch.bfloat16) * 0.1)(D, N)
        log_dt = (lambda *s: torch.randn(*s, dtype=torch.bfloat16) * 0.05)(D) * 0.5 - 4.0
        Dskip = (lambda *s: torch.randn(*s, dtype=torch.bfloat16) * 0.05)(D)
        return {
            "u": _w((lambda *s: torch.randn(*s, dtype=torch.bfloat16) * 0.05)(B, L, D)),
            "A_re": _w(A_re),
            "A_im": _w(A_im),
            "B_re": _w(B_re),
            "B_im": _w(B_im),
            "C_re": _w(C_re),
            "C_im": _w(C_im),
            "log_dt": _w(log_dt),
            "Dskip": _w(Dskip),
        }
    _A_in = _A_setup()

    def _B_setup():
        B, S, D, F = 1, 2048, 576, 4608
        return {
            "x": _w((lambda *s: torch.randn(*s, dtype=torch.bfloat16) * 0.05)(B, S, D)),
            "w1": _w((lambda *s: torch.randn(*s, dtype=torch.bfloat16) * 6.4)(D, F) * (D ** -0.5)),
            "b1": _w((lambda *s: torch.randn(*s, dtype=torch.bfloat16) * 0.05)(F)),
            "w2": _w((lambda *s: torch.randn(*s, dtype=torch.bfloat16) * 0.05)(F, D) * (F ** -0.5)),
        }
    _B_in = _B_setup()

    return {
        "A_u": _A_in["u"],
        "A_A_re": _A_in["A_re"],
        "A_A_im": _A_in["A_im"],
        "A_B_re": _A_in["B_re"],
        "A_B_im": _A_in["B_im"],
        "A_C_re": _A_in["C_re"],
        "A_C_im": _A_in["C_im"],
        "A_log_dt": _A_in["log_dt"],
        "A_Dskip": _A_in["Dskip"],
        "B_x": _B_in["x"],
        "B_w1": _B_in["w1"],
        "B_b1": _B_in["b1"],
        "B_w2": _B_in["w2"],
        "gate_w": _w((lambda *s: torch.randn(*s, dtype=torch.bfloat16) * 0.05)(576) * 16.0),
    }

def reference(A_u, A_A_re, A_A_im, A_B_re, A_B_im, A_C_re, A_C_im, A_log_dt, A_Dskip, B_x, B_w1, B_b1, B_w2, gate_w):
    def _A_ref(u, A_re, A_im, B_re, B_im, C_re, C_im, log_dt, Dskip):
        Bsz, L, D = u.shape
        dt = torch.exp(log_dt)[:, None]
        A = A_re + 1j * A_im
        Bc = B_re + 1j * B_im
        Cc = C_re + 1j * C_im
        logdA = dt * A
        dB = dt * Bc
        l = (lambda x, dt: x.to(dt))(torch.arange(L), A_re.dtype)
        P = torch.exp(logdA[:, :, None] * l[None, None, :])
        K = torch.einsum("dn,dnl,dn->dl", Cc, P, dB).real
        L2 = 2 * L
        Kp = _pad(K, ((0, 0), (0, L)))
        up = (lambda x, *d: x.permute(*d))(u, 0, 2, 1)
        up = _pad(up, ((0, 0), (0, 0), (0, L)))
        Kf = (lambda x, axes=(-2,-1): torch.fft.rfft2(x.float(), dim=axes))(Kp[:, None, :], axes=(-2, -1))
        Uf = (lambda x, axes=(-2,-1): torch.fft.rfft2(x.float(), dim=axes))(up[:, :, None, :], axes=(-2, -1))
        Yf = Uf * Kf[None, :, :, :]
        y = (lambda x, s, axes=(-2,-1): torch.fft.irfft2(x, s=s, dim=axes).to(torch.bfloat16))(Yf, (1, L2), axes=(-2, -1))[:, :, 0, :L]
        y = (lambda x, *d: x.permute(*d))(y, 0, 2, 1) + u * Dskip[None, None, :]
        return y

    def _B_ref(x, w1, b1, w2):
        h = torch.einsum("bsd,df->bsf", x, w1) + b1
        sp = torch.log1p(torch.exp(-torch.abs(h))) + torch.where(h > 0, h, torch.zeros_like(h))
        act = h * torch.tanh(sp)
        return torch.einsum("bsf,fd->bsd", act, w2)

    x = A_u
    g = _sigmoid((x * gate_w).sum(-1, keepdims=True))
    a = _A_ref(x, A_A_re, A_A_im, A_B_re, A_B_im, A_C_re, A_C_im, A_log_dt, A_Dskip)
    b = _B_ref(x, B_w1, B_b1, B_w2)
    return g * a + (1 - g) * b
```

```python
import struct


def f2u(x):
    return struct.unpack("<I", struct.pack("<f", x))[0]


def vr(a, n=1):
    return f"v{a}" if n == 1 else f"v[{a}:{a + n - 1}]"


def sr(a, n=1):
    return f"s{a}" if n == 1 else f"s[{a}:{a + n - 1}]"


class Asm:
    def __init__(self):
        self.lines = []
        self.n_lds = 0
        self.lds_done = 0
        self.n_vm = 0
        self.vm_done = 0
        self.n_ins = 0

    def raw(self, text):
        self.lines.append(text)

    def c(self, text):
        self.lines.append("    ; " + text)

    def label(self, name):
        self.lines.append(name + ":")

    def i(self, text):
        self.lines.append("    " + text)
        self.n_ins += 1
        return self.n_ins

    def nop(self, n):
        while n > 0:
            k = min(n, 16)
            self.lines.append(f"    s_nop {k - 1}")
            self.n_ins += k
            n -= k

    def dist(self, since, need):
        have = self.n_ins - since
        if have < need:
            self.nop(need - have)

    def lds(self, text):
        self.i(text)
        self.n_lds += 1
        return self.n_lds

    def vm(self, text):
        self.i(text)
        self.n_vm += 1
        return self.n_vm

    def wait(self, lds=None, vm=None):
        parts = []
        if vm is not None and vm > self.vm_done:
            n = min(self.n_vm - vm, 63)
            parts.append(f"vmcnt({n})")
            self.vm_done = self.n_vm - n
        if lds is not None and lds > self.lds_done:
            n = min(self.n_lds - lds, 15)
            parts.append(f"lgkmcnt({n})")
            self.lds_done = self.n_lds - n
        if parts:
            self.i("s_waitcnt " + " ".join(parts))

    def wait_all_lds(self):
        self.i("s_waitcnt lgkmcnt(0)")
        self.lds_done = self.n_lds

    def wait_all_vm(self):
        self.i("s_waitcnt vmcnt(0)")
        self.vm_done = self.n_vm

    def text(self):
        return "\n".join(self.lines) + "\n"
```

```python
from asmlib import *
from layout import *
from gen_mlp import srd
import layout

SC1 = " sc1"
UT_CH = 4608
L_UT = 0
K_COPY = 4160
K_BUF = 2 * K_COPY
L_K = 9 * UT_CH
L_D9 = L_K + 9 * K_BUF
S_CW, S_CH, S_KB = 29, 31, 32
S_C1, S_C2, S_C3, S_C4, S_C5, S_C6, S_C7, S_C8 = 33, 34, 35, 36, 37, 38, 98, 30


def flag_reset(a, idx_sgpr, vtmp):
    a.i(f"s_lshl_b32 s{S_FW}, s{idx_sgpr}, 7")
    a.i(f"s_add_u32 s{S_FW}, s{S_FW}, {WS_FLAG2}")
    a.i(f"s_cmp_lg_u32 s{S_W}, 0")
    lab = f"L_rst{a.n_ins}"
    a.i(f"s_cbranch_scc1 {lab}")
    a.i(f"v_mov_b32 v{vtmp}, 0")
    a.i("s_mov_b64 exec, 1")
    a.i(f"buffer_store_dword v{vtmp}, off, s[{R_WS}:{R_WS + 3}], s{S_FW}{SC1}")
    a.i("s_mov_b64 exec, -1")
    a.label(lab)
    return a.n_vm


def flag_count(a, vtmp, mark):
    a.i(f"s_cmp_lg_u32 s{S_W}, 0")
    lab = f"L_cnt{a.n_ins}"
    a.i(f"s_cbranch_scc1 {lab}")
    a.i(f"s_waitcnt vmcnt({a.n_vm - mark})")
    a.i(f"v_mov_b32 v{vtmp}, 1")
    a.i("s_mov_b64 exec, 1")
    a.i(f"buffer_atomic_add v{vtmp}, off, s[{R_OUT}:{R_OUT + 3}], 0{SC1}")
    a.i("s_mov_b64 exec, -1")
    a.label(lab)


def flag_set(a, vtmp):
    a.i(f"v_mov_b32 v{vtmp}, 1")
    a.i("s_mov_b64 exec, 1")
    a.i(f"buffer_store_dword v{vtmp}, off, s[{R_WS}:{R_WS + 3}], s{S_FW}{SC1}")


def gen_conv(a, cfg):
    stamps = cfg.get("stamps", False)

    def stamp(k):
        if stamps:
            layout.stamp(a, k)

    a.label("L_conv")
    if cfg.get("codepf", True):
        a.i(f"s_getpc_b64 s[{S_PC}:{S_PC + 1}]")
        a.label("L_conv_pc")
        a.i("v_lshlrev_b32 v2, 7, v0")
        a.i("v_min_u32 v2, L_conv_end-L_conv_pc-4, v2")
        a.vm(f"global_load_dword v2, v2, s[{S_PC}:{S_PC + 1}]")
    VTF, VTG = 5, 6
    VPR, VPW, VPS = 9, 10, 11
    VT0, VT1A, VT1B, VT2 = 12, 13, 14, 15
    VE0, VE0P, VE1, VE1P, VE2, VE3 = 16, 17, 18, 19, 20, 21
    VKW, VSEL, VL4, VUW, VUO, VGO, VPF = 22, 23, 24, 25, 26, 27, 28
    VA0, VB0, VO = 30, 34, 35
    VIN = 36
    VP = 52
    VE, VH = 84, 88
    VD, VD9 = 100, 112
    T = 124
    U = 144
    GX, GW = 168, 186
    A = [64, 96]
    B = [128, 160]
    Y = 192
    a.i(f"s_lshl_b32 s{S_CW}, s{S_XCD}, 3")
    a.i(f"s_add_u32 s{S_CW}, s{S_CW}, s{S_J}")
    a.i(f"s_sub_u32 s{S_CW}, s{S_CW}, 24")
    a.i(f"v_mul_u32_u24 v{VUO}, {4 * 1152}, v0")
    a.i(f"v_lshrrev_b32 v{VUW}, 1, v0")
    a.i(f"v_and_b32 v{T}, 1, v0")
    a.i(f"v_xor_b32 v{T}, 1, v{T}")
    a.i(f"v_lshlrev_b32 v{T}, 3, v{T}")
    a.i(f"v_lshl_add_u32 v{VUW}, v{VUW}, 4, v{T}")
    a.i(f"s_sub_u32 s3, s{S_J}, 24")
    a.i(f"s_lshl_b32 s3, s3, 9")
    a.i(f"v_add_u32 v{VPF}, s3, v0")
    a.i("v_and_b32 v0, 63, v0")
    a.i("v_and_b32 v3, 15, v0")
    a.i("v_lshrrev_b32 v4, 4, v0")
    a.i(f"v_lshlrev_b32 v{VL4}, 2, v0")
    a.c("tau values: F = 8r; G0 = 128*(r>>3) + (r&7); G1 = two finer levels; G2 = 1024 + 128r")
    a.i(f"v_lshlrev_b32 v{T}, 3, v3")
    a.i(f"v_cvt_f32_u32 v{VTF}, v{T}")
    a.i(f"v_lshrrev_b32 v{T}, 3, v3")
    a.i(f"v_and_b32 v{T + 1}, 7, v3")
    a.i(f"v_lshl_add_u32 v{T + 2}, v{T}, 7, v{T + 1}")
    a.i(f"v_cvt_f32_u32 v{VTG}, v{T + 2}")
    a.i(f"v_lshrrev_b32 v{T + 2}, 2, v3")
    a.i(f"v_and_b32 v{T + 3}, 3, v3")
    a.i(f"v_lshlrev_b32 v{T + 3}, 1, v{T + 3}")
    a.i(f"v_lshl_add_u32 v{T + 2}, v{T + 2}, 7, v{T + 3}")
    a.i(f"v_add_u32 v{T + 2}, 256, v{T + 2}")
    a.i(f"v_lshrrev_b32 v{T + 3}, 1, v3")
    a.i(f"v_and_b32 v{T + 4}, 1, v3")
    a.i(f"v_lshlrev_b32 v{T + 4}, 2, v{T + 4}")
    a.i(f"v_cmp_gt_u32 vcc, 8, v3")
    a.i(f"v_lshl_add_u32 v{T + 3}, v{T + 3}, 7, v{T + 4}")
    a.i(f"v_lshlrev_b32 v{T + 4}, 7, v3")
    a.i(f"v_cndmask_b32 v{T + 2}, v{T + 3}, v{T + 2}, vcc")
    a.i(f"v_cvt_f32_u32 v{VTG + 1}, v{T + 2}")
    a.i(f"v_add_u32 v{T + 4}, 1024, v{T + 4}")
    a.i(f"v_cvt_f32_u32 v{VTG + 2}, v{T + 4}")
    a.c("LDS addresses")
    a.i(f"s_mul_i32 s{S_KB}, s{S_W}, {K_BUF}")
    a.i(f"s_add_u32 s{S_KB}, s{S_KB}, {L_K}")
    a.i(f"v_lshl_add_u32 v{VPR}, v4, 6, s{S_KB}")
    a.i(f"v_lshl_add_u32 v{VPW}, v0, 5, s{S_KB}")
    a.i(f"s_lshl_b32 s3, s{S_W}, 8")
    a.i(f"s_add_u32 s3, s3, 2048")
    a.i(f"v_add_u32 v{VPS}, s3, v{VPR}")
    a.i(f"s_add_u32 s{S_C1}, s{S_KB}, 4608")
    a.i(f"v_lshrrev_b32 v{T}, 1, v4")
    a.i(f"v_and_b32 v{T + 1}, 1, v4")
    a.i(f"v_lshlrev_b32 v{T + 2}, 4, v3")
    a.i(f"v_lshl_add_u32 v{T + 2}, v{T}, 8, v{T + 2}")
    a.i(f"v_lshl_add_u32 v{T + 2}, v{T + 1}, 3, v{T + 2}")
    a.i(f"v_add_u32 v{VT0}, s{S_C1}, v{T + 2}")
    a.i(f"v_lshlrev_b32 v{T + 2}, 3, v3")
    a.i(f"v_lshlrev_b32 v{T + 3}, 2, v3")
    a.i(f"v_cmp_gt_u32 vcc, 2, v4")
    a.i(f"v_mov_b32 v{T + 4}, 64")
    a.i(f"s_add_u32 s3, s{S_C1}, 512")
    a.i(f"v_cndmask_b32 v{T + 2}, v{T + 3}, v{T + 2}, vcc")
    a.i(f"v_cndmask_b32 v{T + 4}, v{T + 4}, 4, vcc")
    a.i(f"v_lshl_add_u32 v{T + 2}, v4, 7, v{T + 2}")
    a.i(f"v_add_u32 v{VT1A}, s3, v{T + 2}")
    a.i(f"v_add_u32 v{VT1B}, v{VT1A}, v{T + 4}")
    a.i(f"v_lshlrev_b32 v{T + 2}, 1, v3")
    a.i(f"v_lshl_add_u32 v{T + 2}, v4, 7, v{T + 2}")
    a.i(f"s_add_u32 s3, s{S_C1}, 1024")
    a.i(f"v_add_u32 v{VT2}, s3, v{T + 2}")
    a.i(f"v_lshl_add_u32 v{VE0}, v0, 4, s{S_C1}")
    a.i(f"v_max_u32 v{T + 2}, 1, v0")
    a.i(f"v_lshl_add_u32 v{VE0P}, v{T + 2}, 4, s{S_C1}")
    a.i(f"v_add_u32 v{VE0P}, -2, v{VE0P}")
    a.i(f"s_add_u32 s3, s{S_C1}, 512")
    a.i(f"v_lshl_add_u32 v{VE1}, v0, 3, s3")
    a.i(f"v_min_u32 v{T + 2}, 1, v0")
    a.i(f"v_lshl_add_u32 v{T + 2}, v{T + 2}, 1, v{VE1}")
    a.i(f"v_add_u32 v{VE1P}, -2, v{T + 2}")
    a.i(f"s_add_u32 s3, s{S_C1}, 768")
    a.i(f"v_lshl_add_u32 v{VE2}, v0, 2, s3")
    a.i(f"s_add_u32 s3, s{S_C1}, 1024")
    a.i(f"v_lshl_add_u32 v{VE3}, v0, 1, s3")
    a.i(f"v_lshl_add_u32 v{VKW}, v0, 4, s{S_KB}")
    a.i(f"v_and_b32 v{T + 2}, 1, v0")
    a.i(f"v_cmp_eq_u32 vcc, 0, v{T + 2}")
    a.i(f"v_mov_b32 v{T + 2}, 0x05040504")
    a.i(f"v_mov_b32 v{T + 3}, 0x05040100")
    a.i(f"v_cndmask_b32 v{VSEL}, v{T + 2}, v{T + 3}, vcc")
    a.c("Toeplitz read base: i0 = 16*(q>>1) - 8*(q&1) + r - 7; copy = i0 & 1")
    a.i(f"v_lshl_add_u32 v{T + 2}, v{T}, 4, v3")
    a.i(f"v_lshlrev_b32 v{T + 3}, 3, v{T + 1}")
    a.i(f"v_sub_u32 v{T + 2}, v{T + 2}, v{T + 3}")
    a.i(f"v_add_u32 v{T + 2}, 9, v{T + 2}")
    a.i(f"v_and_b32 v{T + 3}, 1, v{T + 2}")
    a.i(f"v_add_u32 v{T + 2}, v{T + 2}, v{T + 3}")
    a.i(f"v_mul_u32_u24 v{T + 3}, {K_COPY}, v{T + 3}")
    a.i(f"v_lshl_add_u32 v{T + 2}, v{T + 2}, 1, v{T + 3}")
    a.i(f"v_add_u32 v{VA0}, s{S_KB}, v{T + 2}")
    for k in range(1, 4):
        a.i(f"v_add_u32 v{VA0 + k}, {1024 * k}, v{VA0}")
    a.c("sample read base: 2*(16c - 16*(q>>1) + 8*(q&1)) + 32")
    a.i(f"v_sub_u32 v{T + 2}, v3, v{T}")
    a.i(f"v_lshlrev_b32 v{T + 2}, 5, v{T + 2}")
    a.i(f"v_lshl_add_u32 v{T + 2}, v{T + 1}, 4, v{T + 2}")
    a.i(f"s_mul_i32 s3, s{S_W}, {UT_CH}")
    a.i(f"s_add_u32 s3, s3, {L_UT + 32}")
    a.i(f"v_add_u32 v{VB0}, s3, v{T + 2}")
    a.i(f"v_lshlrev_b32 v{VO}, 5, v3")
    a.i(f"v_lshl_add_u32 v{VO}, v4, 3, v{VO}")
    a.i(f"v_mul_u32_u24 v{VGO}, 1152, v4")
    a.i(f"v_lshl_add_u32 v{VGO}, v3, 3, v{VGO}")
    a.c("zero: pads in front of the samples, the two accumulation areas")
    for i in range(4):
        a.i(f"v_mov_b32 v{T + 4 + i}, 0")
    a.i(f"v_cmp_gt_u32 vcc, 32, v0")
    a.i(f"s_mul_i32 s3, s{S_W}, {UT_CH}")
    a.i(f"v_mov_b32 v{T + 2}, {8 * UT_CH - 512}")
    a.i(f"v_mov_b32 v{T + 3}, s3")
    a.i(f"v_cndmask_b32 v{T + 2}, v{T + 2}, v{T + 3}, vcc")
    a.i(f"v_lshl_add_u32 v{T + 2}, v0, 4, v{T + 2}")
    a.lds(f"ds_write_b128 v{T + 2}, {vr(T + 4, 4)} offset:{L_UT}")
    a.i(f"s_mul_i32 s{S_CH}, s{S_CW}, 9")
    a.i(f"s_add_u32 s3, s{S_CH}, s{S_W}")
    a.i(f"s_lshl_b32 s{S_C8}, s3, 12")
    a.i(f"s_add_u32 s{S_C8}, s{S_C8}, {WS_AT}")
    a.i(f"v_mov_b32 v{T + 1}, s3")
    a.i(f"s_add_u32 s3, s{S_CH}, 8")
    a.i(f"v_mov_b32 v{T + 3}, s3")
    for o in (0, 2):
        a.i(f"v_lshl_add_u32 v{T + o}, v{T + o + 1}, 8, v{VL4}")
        a.i(f"v_lshlrev_b32 v{T + o + 1}, 1, v{T + o + 1}")
    a.wait_all_lds()
    for n in range(2):
        for k, p in enumerate((P_ARE, P_AIM, P_BRE, P_BIM, P_CRE, P_CIM)):
            a.vm(f"global_load_dword v{VIN + 8 * n + k}, v{T + 2 * n}, s[{p}:{p + 1}]")
        a.vm(f"global_load_ushort v{VIN + 8 * n + 6}, v{T + 2 * n + 1}, s[{P_LDT}:{P_LDT + 1}]")
        vm_in = a.vm(f"global_load_ushort v{VIN + 8 * n + 7}, v{T + 2 * n + 1}, s[{P_DSK}:{P_DSK + 1}]")
    srd(a, R_WS, P_WS, None, WS_USED)
    srd(a, R_OUT, P_DBG, None, 256)
    mark = flag_reset(a, S_CW, T + 4)
    a.i(f"s_mul_i32 s3, s{S_CW}, 18")
    srd(a, R_X, P_U, 3, 0)
    a.i(f"s_sub_u32 s{R_X + 2}, {2048 * 1152}, s3")
    a.i(f"s_lshl_b32 s3, s{S_CW}, 3")
    a.i(f"s_add_u32 s3, s3, s{S_W}")
    a.i(f"s_lshl_b32 s{S_C7}, s3, 5")
    a.i(f"s_add_u32 s{S_C7}, s{S_C7}, {WS_G}")
    a.i(f"s_mul_i32 s3, s3, {4 * 1152}")
    srd(a, R_W1, P_U, 3, 4 * 1152)
    srd(a, R_M, P_GW, None, 1152)
    a.i(f"s_lshr_b32 s3, s{S_XCD}, 1")
    a.i(f"s_mul_i32 s3, s3, {1152 * 1152}")
    srd(a, R_W2, P_W2, 3, 1152 * 1152)
    side = []
    vm_u = [0]
    for row in range(4):
        def f(row=row):
            a.vm(f"buffer_load_dwordx4 {vr(U + 6 * row, 4)}, v{VUO}, s[{R_X}:{R_X + 3}], 0 offen offset:{row * 1152}")
            vm_u[0] = a.vm(f"buffer_load_ushort v{U + 6 * row + 4}, v{VUO}, s[{R_X}:{R_X + 3}], 0 offen offset:{row * 1152 + 16}")
        side.append(f)

    def gate_loads():
        a.i(f"v_lshlrev_b32 v{T}, 3, v3")
        for i in range(9):
            a.vm(f"buffer_load_dwordx2 {vr(GX + 2 * i, 2)}, v{VGO}, s[{R_W1}:{R_W1 + 3}], 0 offen offset:{128 * i}")
            vm_u[0] = a.vm(f"buffer_load_dwordx2 {vr(GW + 2 * i, 2)}, v{T}, s[{R_M}:{R_M + 3}], 0 offen offset:{128 * i}")
    side.append(gate_loads)
    if cfg.get("pf", True):
        def touch(blk):
            if blk == 0:
                a.i(f"v_min_u32 v{VPF}, {3456 - 1}, v{VPF}")
                a.i(f"v_mul_u32_u24 v{T}, 87382, v{VPF}")
                a.i(f"v_lshrrev_b32 v{T}, 18, v{T}")
                a.i(f"v_mul_u32_u24 v{T}, {1152 - 384}, v{T}")
                a.i(f"v_lshl_add_u32 v{VPF}, v{VPF}, 7, v{T}")
            a.vm(f"buffer_load_dword v2, v{VPF}, s[{R_W2}:{R_W2 + 3}], 0 offen offset:{384 * blk}")
        side += [lambda b=b: touch(b) for b in range(3)]
    a.i(f"s_mov_b32 s{S_C2}, 0x3fb8aa3b")
    a.i(f"s_mov_b32 s{S_C3}, 0x3e22f983")
    a.i(f"s_mov_b32 s{S_C4}, 0x01000100")
    a.i(f"s_mov_b32 s{S_C5}, 0x05040302")
    a.i(f"s_mov_b32 s{S_C6}, 0x03020302")
    side.pop(0)()
    a.wait(vm=vm_in)
    stamp(1)
    a.c("per-mode parameters (two modes per lane) of the own and of the shared channel")
    for n in range(2):
        I = VIN + 8 * n
        a.i(f"v_lshlrev_b32 v{T}, 16, v{I + 6}")
        a.i(f"v_mul_f32 v{T}, s{S_C2}, v{T}")
        a.i(f"v_exp_f32 v{T}, v{T}")
        a.i("s_nop 0")
        a.i(f"v_cvt_pk_bf16_f32 v{T}, v{T}, v{T}")
        a.i(f"v_and_b32 v{T}, 0xffff0000, v{T}")
        for m in range(2):
            un = (lambda d, s: a.i(f"v_lshlrev_b32 v{d}, 16, v{s}")) if m == 0 else (lambda d, s: a.i(f"v_and_b32 v{d}, 0xffff0000, v{s}"))
            o = T + 8 + 4 * m
            for k in range(6):
                un(T + 1 + k, I + k)
            for k in range(1, 5):
                a.i(f"v_mul_f32 v{T + k}, v{T}, v{T + k}")
            a.i(f"v_mul_f32 v{o}, s{S_C2}, v{T + 1}")
            a.i(f"v_mul_f32 v{o + 1}, s{S_C3}, v{T + 2}")
            a.i(f"v_mul_f32 v{o + 2}, v{T + 5}, v{T + 3}")
            a.i(f"v_mul_f32 v{o + 3}, v{T + 5}, v{T + 4}")
            a.i(f"v_rndne_f32 v{T + 1}, v{o + 1}")
            a.i(f"v_fma_f32 v{o + 2}, -v{T + 6}, v{T + 4}, v{o + 2}")
            a.i(f"v_fmac_f32 v{o + 3}, v{T + 6}, v{T + 3}")
            a.i(f"v_sub_f32 v{o + 1}, v{o + 1}, v{T + 1}")
            a.lds(f"ds_write_b128 v{VPW}, {vr(o, 4)} offset:{2048 * n + 16 * m}")
    flag_count(a, T, mark)
    a.wait_all_lds()
    for i in range(4):
        a.lds(f"ds_read_b128 {vr(VP + 4 * i, 4)}, v{VPR} offset:{16 * i}")
    X, Yy, E_, C_ = T, T + 4, T + 8, T + 12
    for ks in range(9):
        P = VP + 16 * (ks % 2)
        Pn = VP + 16 * (1 - ks % 2)
        D = VD if ks < 8 else VD9
        cin = lambda d: "0" if ks in (0, 8) else vr(d, 4)
        a.wait_all_lds()
        for i in range(4):
            if ks < 7:
                a.lds(f"ds_read_b128 {vr(Pn + 4 * i, 4)}, v{VPR} offset:{256 * (ks + 1) + 16 * i}")
            elif ks == 7:
                a.lds(f"ds_read_b128 {vr(Pn + 4 * i, 4)}, v{VPS} offset:{16 * i}")
        if side:
            side.pop(0)()
        for tile in range(4):
            tau = VTF if tile == 0 else VTG + tile - 1
            each = lambda fmt: [a.i(fmt(i)) for i in range(4)]
            each(lambda i: f"v_mul_f32 v{X + i}, v{P + 4 * i}, v{tau}")
            each(lambda i: f"v_mul_f32 v{Yy + i}, v{P + 4 * i + 1}, v{tau}")
            each(lambda i: f"v_exp_f32 v{X + i}, v{X + i}")
            if tile >= 2:
                each(lambda i: f"v_fract_f32 v{Yy + i}, v{Yy + i}")
            each(lambda i: f"v_cos_f32 v{C_ + i}, v{Yy + i}")
            each(lambda i: f"v_sin_f32 v{Yy + i}, v{Yy + i}")
            each(lambda i: f"v_mul_f32 v{C_ + i}, v{X + i}, v{C_ + i}")
            each(lambda i: f"v_mul_f32 v{Yy + i}, v{X + i}, v{Yy + i}")
            if tile == 0:
                each(lambda i: f"v_mul_f32 v{X + i}, v{C_ + i}, v{P + 4 * i + 2}")
                each(lambda i: f"v_mul_f32 v{E_ + i}, v{C_ + i}, v{P + 4 * i + 3}")
                each(lambda i: f"v_fma_f32 v{X + i}, -v{Yy + i}, v{P + 4 * i + 3}, v{X + i}")
                each(lambda i: f"v_fma_f32 v{E_ + i}, -v{Yy + i}, v{P + 4 * i + 2}, -v{E_ + i}")
                each(lambda i: f"v_cvt_pk_bf16_f32 v{VE + i}, v{X + i}, v{E_ + i}")
            else:
                h = VH + 4 * (tile - 1)
                each(lambda i: f"v_cvt_pk_bf16_f32 v{h + i}, v{C_ + i}, v{Yy + i}")
                if tile >= 2:
                    d, hp = D + 4 * (tile - 2), VH + 4 * (tile - 2)
                    a.i(f"v_mfma_f32_16x16x32_bf16 {vr(d, 4)}, {vr(hp, 4)}, {vr(VE, 4)}, {cin(d)}")
        a.i("s_nop 1")
        last = a.i(f"v_mfma_f32_16x16x32_bf16 {vr(D + 8, 4)}, {vr(VH + 8, 4)}, {vr(VE, 4)}, {cin(D + 8)}")
    assert not side
    stamp(2)

    def expand(D, dsk, kw):
        a.c("skip connection folded into lag 0; distinct values -> table")
        a.i(f"v_cmp_eq_u32 vcc, 0, v0")
        a.i(f"v_lshlrev_b32 v{T}, 16, v{dsk}")
        a.i("s_nop 0")
        a.i(f"v_cndmask_b32 v{T}, 0, v{T}, vcc")
        a.i(f"v_add_f32 v{D}, v{D}, v{T}")
        for i in range(6):
            a.i(f"v_cvt_pk_bf16_f32 v{T + i}, v{D + 2 * i}, v{D + 2 * i + 1}")
        a.lds(f"ds_write_b64 v{VT0}, {vr(T, 2)}")
        a.lds(f"ds_write_b32 v{VT1A}, v{T + 2}")
        a.lds(f"ds_write_b32 v{VT1B}, v{T + 3}")
        a.lds(f"ds_write_b16 v{VT2}, v{T + 4}")
        a.lds(f"ds_write_b16_d16_hi v{VT2}, v{T + 4} offset:32")
        a.lds(f"ds_write_b16 v{VT2}, v{T + 5} offset:64")
        a.lds(f"ds_write_b16_d16_hi v{VT2}, v{T + 5} offset:96")
        a.wait_all_lds()
        a.c("expand to the 2048 lags (bf16(l) is piecewise constant), two copies one element apart")
        S0, S1, S2, S3, S4 = VP, VP + 6, VP + 12, VP + 14, VP + 16
        a.lds(f"ds_read2_b64 {vr(S0, 4)}, v{VE0} offset0:0 offset1:1")
        a.lds(f"ds_read_u16 v{S0 + 4}, v{VE0P}")
        a.lds(f"ds_read2_b64 {vr(S1, 4)}, v{VE1} offset0:0 offset1:1")
        a.lds(f"ds_read_u16 v{S1 + 4}, v{VE1P}")
        a.lds(f"ds_read2_b32 {vr(S2, 2)}, v{VE2} offset0:0 offset1:1")
        a.lds(f"ds_read_u16 v{S3}, v{VE3}")
        a.lds(f"ds_read_u16 v{S3 + 1}, v{VE3} offset:2")
        a.lds(f"ds_read_u16 v{S4}, v{VE3} offset:128")
        a.lds(f"ds_read_u16 v{S4 + 1}, v{VE3} offset:130")
        O0, O1, Z = T, T + 4, T + 8
        for i in range(4):
            a.i(f"v_mov_b32 v{Z + i}, 0")
        a.wait_all_lds()

        def shifted(c0, prev_hi):
            a.i(f"v_alignbit_b32 v{O1}, v{c0}, v{prev_hi}, 16")
            for k in range(1, 4):
                a.i(f"v_alignbit_b32 v{O1 + k}, v{c0 + k}, v{c0 + k - 1}, 16")

        def put(c0, piece0):
            a.lds(f"ds_write_b128 v{kw}, {vr(c0, 4)} offset:{32 + 16 * piece0}")
            a.lds(f"ds_write_b128 v{kw}, {vr(O1, 4)} offset:{K_COPY + 32 + 16 * piece0}")

        a.i("s_mov_b64 exec, 3")
        a.lds(f"ds_write_b128 v{kw}, {vr(Z, 4)}")
        a.lds(f"ds_write_b128 v{kw}, {vr(Z, 4)} offset:{K_COPY}")
        a.i("s_mov_b32 exec_lo, -1")
        a.i(f"v_lshlrev_b32 v{S0 + 4}, 16, v{S0 + 4}")
        a.i(f"v_lshlrev_b32 v{S1 + 4}, 16, v{S1 + 4}")
        a.i(f"v_cndmask_b32 v{S0 + 4}, v{S0 + 4}, 0, vcc")
        shifted(S0, S0 + 4)
        put(S0, 0)
        a.i(f"v_perm_b32 v{O0}, v{S1}, v{S1}, s{S_C4}")
        a.i(f"v_perm_b32 v{O0 + 1}, v{S1 + 1}, v{S1}, s{S_C5}")
        a.i(f"v_perm_b32 v{O0 + 2}, v{S1 + 1}, v{S1 + 1}, s{S_C4}")
        a.i(f"v_perm_b32 v{O0 + 3}, v{S1 + 2}, v{S1 + 1}, s{S_C5}")
        shifted(O0, S1 + 4)
        put(O0, 32)
        a.i("s_mov_b64 exec, -1")
        a.i(f"v_perm_b32 v{O0}, v{S2}, v{S2}, s{S_C4}")
        a.i(f"v_mov_b32 v{O0 + 1}, v{S2}")
        a.i(f"v_perm_b32 v{O0 + 2}, v{S2}, v{S2}, s{S_C6}")
        a.i(f"v_perm_b32 v{O0 + 3}, v{S2 + 1}, v{S2 + 1}, s{S_C4}")
        shifted(O0, O0)
        put(O0, 64)
        for s, piece in ((S3, 128), (S4, 192)):
            a.i(f"v_perm_b32 v{O0}, v{s}, v{s}, s{S_C4}")
            a.i(f"v_perm_b32 v{O0 + 1}, v{s}, v{s}, s{S_C4}")
            a.i(f"v_perm_b32 v{O0 + 2}, v{s + 1}, v{s}, v{VSEL}")
            a.i(f"v_perm_b32 v{O0 + 3}, v{s + 1}, v{s + 1}, s{S_C4}")
            shifted(O0, O0)
            put(O0, piece)

    expand(VD, VIN + 7, VKW)
    a.c("this wave's share of the shared channel")
    a.i(f"s_mul_i32 s3, s{S_W}, 3072")
    a.i(f"s_add_u32 s3, s3, {L_D9}")
    a.i(f"v_lshl_add_u32 v{T + 12}, v0, 4, s3")
    for i in range(3):
        a.lds(f"ds_write_b128 v{T + 12}, {vr(VD9 + 4 * i, 4)} offset:{1024 * i}")
    a.c("transpose 4 rows x 9 channels, newest sample first")
    a.i(f"s_mov_b32 s{S_C2}, 0x05040100")
    a.i(f"s_mov_b32 s{S_C3}, 0x07060302")
    a.wait(vm=vm_u[0])
    for ch in range(9):
        o = VP + 2 * ch
        for k in range(2):
            lo, hi = U + 6 * (3 - 2 * k) + ch // 2, U + 6 * (2 - 2 * k) + ch // 2
            a.i(f"v_perm_b32 v{o + k}, v{hi}, v{lo}, s{S_C3 if ch % 2 else S_C2}")
        a.lds(f"ds_write_b64 v{VUW}, {vr(o, 2)} offset:{L_UT + ch * UT_CH + 512}")
    a.c("gate of 4 rows: 16 lanes per row, products rounded to bf16 like the reference")
    acc = T + 8
    for k in range(18):
        x, w = GX + k, GW + k
        a.i(f"v_lshlrev_b32 v{T}, 16, v{x}")
        a.i(f"v_lshlrev_b32 v{T + 1}, 16, v{w}")
        a.i(f"v_and_b32 v{T + 2}, 0xffff0000, v{x}")
        a.i(f"v_and_b32 v{T + 3}, 0xffff0000, v{w}")
        a.i(f"v_mul_f32 v{T}, v{T}, v{T + 1}")
        a.i(f"v_mul_f32 v{T + 2}, v{T + 2}, v{T + 3}")
        a.i(f"v_cvt_pk_bf16_f32 v{T}, v{T}, v{T + 2}")
        if k == 0:
            a.i(f"v_lshlrev_b32 v{acc}, 16, v{T}")
            a.i(f"v_and_b32 v{acc + 1}, 0xffff0000, v{T}")
        else:
            a.i(f"v_lshlrev_b32 v{T + 1}, 16, v{T}")
            a.i(f"v_and_b32 v{T}, 0xffff0000, v{T}")
            a.i(f"v_add_f32 v{acc}, v{acc}, v{T + 1}")
            a.i(f"v_add_f32 v{acc + 1}, v{acc + 1}, v{T}")
    a.i(f"v_add_f32 v{acc}, v{acc}, v{acc + 1}")
    for ctl in ("quad_perm:[1,0,3,2]", "quad_perm:[2,3,0,1]", "row_half_mirror", "row_mirror"):
        a.i("s_nop 1")
        a.i(f"v_add_f32_dpp v{acc}, v{acc}, v{acc} {ctl} row_mask:0xf bank_mask:0xf")
    a.i(f"v_cvt_pk_bf16_f32 v{acc}, v{acc}, v{acc}")
    a.i(f"v_and_b32 v{acc}, 0xffff0000, v{acc}")
    a.i(f"v_mul_f32 v{acc}, 0xbfb8aa3b, v{acc}")
    a.i(f"v_exp_f32 v{acc}, v{acc}")
    a.i(f"v_lshlrev_b32 v{T + 2}, 3, v4")
    a.i(f"v_add_f32 v{acc}, 1.0, v{acc}")
    a.i(f"v_rcp_f32 v{acc}, v{acc}")
    a.i("s_nop 0")
    a.i(f"v_cvt_pk_bf16_f32 v{T}, v{acc}, v{acc}")
    a.i(f"v_and_b32 v{T}, 0xffff0000, v{T}")
    a.i(f"v_sub_f32 v{T + 1}, 1.0, v{T}")
    a.i(f"v_cvt_pk_bf16_f32 v{T + 1}, v{T + 1}, v{T + 1}")
    a.i(f"v_and_b32 v{T + 1}, 0xffff0000, v{T + 1}")
    a.i("s_mov_b32 exec_lo, 0x00010001")
    a.i("s_mov_b32 exec_hi, 0x00010001")
    a.vm(f"buffer_store_dwordx2 {vr(T, 2)}, v{T + 2}, s[{R_WS}:{R_WS + 3}], s{S_C7} offen{SC1}")
    a.i("s_mov_b64 exec, -1")
    a.wait_all_lds()
    stamp(3)
    a.i("s_barrier")
    a.c("wave 7 finishes the kernel of the shared channel (its table sits in that channel's own buffer)")
    a.i(f"s_cmp_lg_u32 s{S_W}, 7")
    a.i("s_cbranch_scc1 L_conv_own")
    a.i(f"v_add_u32 v{T + 12}, {-7 * 3072}, v{T + 12}")
    got = {}
    for w in range(7):
        for i in range(3):
            got[w] = a.lds(f"ds_read_b128 {vr(160 + 12 * w + 4 * i, 4)}, v{T + 12} offset:{3072 * w + 1024 * i}")
    for v in (VT0, VT1A, VT1B, VT2, VE0, VE0P, VE1, VE1P, VE2, VE3, VKW):
        a.i(f"v_add_u32 v{v}, {K_BUF}, v{v}")
    for w in range(7):
        a.wait(lds=got[w])
        for i in range(12):
            a.i(f"v_add_f32 v{VD9 + i}, v{VD9 + i}, v{160 + 12 * w + i}")
    expand(VD9, VIN + 15, VKW)
    a.wait_all_lds()
    a.label("L_conv_own")

    def conv(bs):
        ld = {}

        def loads(b):
            s = b % 2
            ops = []
            for x in range(8):
                def fa(x=x, h=0):
                    o = ((x % 2) * 512 + 64 * b) // 4 + 2 * h
                    ld[("A", b, x)] = a.lds(f"ds_read2_b32 {vr(A[s] + 4 * x + 2 * h, 2)}, v{VA0 + x // 2} offset0:{o} offset1:{o + 1}")

                def fb(x=x):
                    ld[("B", b, x)] = a.lds(f"ds_read_b128 {vr(B[s] + 4 * x, 4)}, v{VB0} offset:{512 * x - 64 * b + 480}")
                ops += [fa, (lambda x=x, fa=fa: fa(x, 1)), fb]
            return ops
        q = loads(0)
        for _ in range(12):
            q.pop(0)()
        for b in range(bs):
            s = b % 2
            q += loads(b + 1) if b + 1 < bs else []
            for J in range(8):
                for x in range(J + 1):
                    a.wait(lds=max(ld[("A", b, x)], ld[("B", b, J - x)]))
                    cin = "0" if (b == 0 and x == 0) else vr(Y + 4 * J, 4)
                    last = a.i(f"v_mfma_f32_16x16x32_bf16 {vr(Y + 4 * J, 4)}, {vr(A[s] + 4 * x, 4)}, {vr(B[s] + 4 * (J - x), 4)}, {cin}")
                    if q:
                        q.pop(0)()
            assert not q
        return last

    last = conv(8)
    a.c("bases for this wave's eighth (lags 32w.. of every 256) of the shared channel")
    a.i(f"s_mul_i32 s3, s{S_W}, {(64 - K_BUF) & 0xffffffff}")
    a.i(f"s_add_u32 s3, s3, {8 * K_BUF}")
    for k in range(4):
        a.i(f"v_add_u32 v{VA0 + k}, s3, v{VA0 + k}")
    a.i(f"s_mul_i32 s3, s{S_W}, {(-64 - UT_CH) & 0xffffffff}")
    a.i(f"s_add_u32 s3, s3, {8 * UT_CH}")
    a.i(f"v_add_u32 v{VB0}, s3, v{VB0}")
    a.dist(last, 8)
    O = VIN
    for J in range(8):
        a.i(f"v_cvt_pk_bf16_f32 v{O + 2 * J}, v{Y + 4 * J}, v{Y + 4 * J + 1}")
        a.i(f"v_cvt_pk_bf16_f32 v{O + 2 * J + 1}, v{Y + 4 * J + 2}, v{Y + 4 * J + 3}")
        a.vm(f"buffer_store_dwordx2 {vr(O + 2 * J, 2)}, v{VO}, s[{R_WS}:{R_WS + 3}], s{S_C8} offen offset:{512 * J}{SC1}")
    stamp(4)
    a.i("s_barrier")
    last = conv(1)
    a.c("partial outputs go through the (now dead) kernel buffers")
    a.i(f"v_lshl_add_u32 v5, v0, 4, s{S_KB}")
    a.i(f"s_lshl_b32 s3, s{S_W}, 10")
    a.i(f"s_add_u32 s3, s3, {L_K}")
    a.i(f"v_lshl_add_u32 v6, v0, 4, s3")
    a.i(f"s_add_u32 s3, s{S_CH}, 8")
    a.i(f"s_lshl_b32 s3, s3, 12")
    a.i(f"s_lshl_b32 s{S_C8}, s{S_W}, 9")
    a.i(f"s_add_u32 s{S_C8}, s{S_C8}, s3")
    a.i(f"s_add_u32 s{S_C8}, s{S_C8}, {WS_AT}")
    a.dist(last, 8)
    for J in range(8):
        a.lds(f"ds_write_b128 v5, {vr(Y + 4 * J, 4)} offset:{1024 * J}")
    a.wait_all_lds()
    a.i("s_barrier")
    got = {}
    for w in range(8):
        got[w] = a.lds(f"ds_read_b128 {vr(8 + 4 * w, 4) if w == 0 else vr(64 + 4 * w, 4)}, v6 offset:{K_BUF * w}")
    for w in range(1, 8):
        a.wait(lds=got[w])
        for i in range(4):
            a.i(f"v_add_f32 v{8 + i}, v{8 + i}, v{64 + 4 * w + i}")
    a.i("v_cvt_pk_bf16_f32 v8, v8, v9")
    a.i("v_cvt_pk_bf16_f32 v9, v10, v11")
    a.vm(f"buffer_store_dwordx2 v[8:9], v{VO}, s[{R_WS}:{R_WS + 3}], s{S_C8} offen{SC1}")
    stamp(5)
    a.wait_all_vm()
    a.i("s_barrier")
    a.i(f"s_cmp_lg_u32 s{S_W}, 0")
    a.i("s_cbranch_scc1 L_conv_done")
    flag_set(a, 2)
    a.label("L_conv_done")
    if stamps:
        stamp(6)
        a.i("s_mov_b64 exec, -1")
        a.wait_all_vm()
        emit_stamps(a, 7)
    a.i("s_endpgm")
    a.label("L_conv_end")
```

```python
from asmlib import *
from layout import *
import layout

V_W1O = 1
V_W2O = 3
V_LW1 = 5
V_LW2 = 8
V_AW = 11
V_AR = 14
V_BIAS = 17
V_FA = 18
V_FE = 19
V_L16 = 20
V_DUMMY = 21
V_BT = 22
V_L8 = 23
V_T = 24
V_PK = 32
V_WF = 40
V_H = 56
V_S = 104
V_X = 112
V_RD = 208
V_B = 232
V_A = 244
V_G = V_S
V_AO = V_S + 2
V_OO = V_S + 3

UNIT = 16384
NK1 = 216
NK = 432
ORDER2 = [(0, 0), (0, 1), (1, 0), (1, 1), (2, 0), (2, 1), (0, 2), (1, 2), (2, 2)] + [(t, u) for t in range(3, 9) for u in range(3)]


def pbuf(t):
    return V_RD if t == 2 else V_H + 16 * (t if t < 2 else (t - 1) % 3)


def wbuf(i):
    return V_WF + 4 * i if i < 4 else V_S + 4


def seg(unit):
    return unit // 4, (unit % 4) * UNIT


class Item:
    def __init__(self, kind, idx, need_stage):
        self.kind, self.idx, self.need = kind, idx, need_stage
        self.unit = None
        self.vm = None
        self.visible = False
        self.last_read = None
        self.freed = False


def mish_groups():
    t = lambda e: V_T + e % 4
    u = lambda e: V_T + 4 + e % 4
    h = lambda e: V_H + 16 * ((e // 16) % 3) + e % 16
    ok = lambda e: 0 <= e < 96
    groups = []
    for e in range(0, 99):
        g, fin = [], None
        if ok(e - 2):
            g.append(f"v_rcp_f32 v{u(e - 2)}, v{u(e - 2)}")
        if ok(e):
            g.append(f"v_mul_f32 v{t(e)}, s{S_LOG2E}, v{h(e)}")
        if ok(e - 1):
            g.append(f"v_fma_f32 v{u(e - 1)}, v{t(e - 1)}, -0.5, -1.0")
        if ok(e - 3) and (e - 3) % 2 == 1:
            g.append(f"v_cvt_pk_bf16_f32 v{V_PK + ((e - 3) % 16) // 2}, v{h(e - 4)}, v{h(e - 3)}")
            if (e - 3) % 8 == 7:
                fin = ((e - 3) // 16, ((e - 3) % 16) // 8)
        groups.append((e // 16 if ok(e) and e % 16 == 0 else None, g, fin))
        g = []
        if ok(e):
            g.append(f"v_exp_f32 v{t(e)}, v{t(e)}")
        if ok(e - 1):
            g.append(f"v_fma_f32 v{u(e - 1)}, v{t(e - 1)}, v{u(e - 1)}, -1.0")
        if ok(e - 2):
            g.append(f"v_fmac_f32 v{h(e - 2)}, v{h(e - 2)}, v{u(e - 2)}")
        if g:
            groups.append((None, g, None))
    return groups


def srd(a, r, p, off, size):
    if off is None:
        a.i(f"s_mov_b32 s{r}, s{p}")
        a.i(f"s_mov_b32 s{r + 1}, s{p + 1}")
    else:
        a.i(f"s_add_u32 s{r}, s{p}, s{off}")
        a.i(f"s_addc_u32 s{r + 1}, s{p + 1}, 0")
    a.i(f"s_mov_b32 s{r + 2}, {size}")
    a.i(f"s_mov_b32 s{r + 3}, 0x20000")


def gen_mlp(a, cfg):
    PF = cfg.get("PF", 3)
    NB = PF + 1
    TIGHT = cfg.get("tight", 32)
    PRE = cfg.get("pre", 6)
    stamps = cfg.get("stamps", False)
    tail = cfg.get("tail", True)
    SC1 = " sc1"
    STK = {int(k): v for k, v in cfg.get("stampk", {"40": 3, "112": 4, "216": 5, "264": 6}).items()}
    ool = []

    def stamp(k):
        if stamps:
            layout.stamp(a, k)

    a.label("L_mlp")
    if cfg.get("codepf", True):
        a.c("pull this role's code into L2")
        a.i(f"s_getpc_b64 s[{S_PC}:{S_PC + 1}]")
        a.label("L_mlp_pc")
        a.i(f"v_lshlrev_b32 v{V_DUMMY}, 7, v0")
        a.i(f"v_min_u32 v{V_DUMMY}, L_mlp_end-L_mlp_pc-4, v{V_DUMMY}")
        a.vm(f"global_load_dword v{V_DUMMY}, v{V_DUMMY}, s[{S_PC}:{S_PC + 1}]")
    a.c("mtile = 8*(x&1) + (j&7), slice = 3*(x>>1) + (j>>3)")
    a.i(f"s_and_b32 s{S_MT}, s{S_XCD}, 1")
    a.i(f"s_lshl_b32 s{S_MT}, s{S_MT}, 3")
    a.i(f"s_and_b32 s3, s{S_J}, 7")
    a.i(f"s_add_u32 s{S_MT}, s{S_MT}, s3")
    a.i(f"s_lshr_b32 s{S_SL}, s{S_XCD}, 1")
    a.i(f"s_mul_i32 s{S_SL}, s{S_SL}, 3")
    a.i(f"s_lshr_b32 s3, s{S_J}, 3")
    a.i(f"s_add_u32 s{S_SL}, s{S_SL}, s3")
    a.i(f"s_and_b32 s{S_MQ}, s{S_W}, 3")
    a.i(f"s_lshr_b32 s{S_P}, s{S_W}, 2")
    a.i(f"s_lshl_b32 s{S_WL}, s{S_W}, 11")
    a.i(f"s_mul_i32 s{S_DELTA}, s{S_P}, {(-512 * 9216 + 128) & 0xffffffff}")
    a.i(f"s_mul_i32 s{S_PN}, s{S_P}, {64 * 9216}")
    a.i(f"s_mov_b32 s{S_LOG2E}, 0x3fb8aa3b")
    T = V_T
    S = V_H + 32
    XO = V_PK + 6
    XA = V_T
    BIAS_UNIT = 9
    a.c("DMA lane offsets")
    a.i("v_and_b32 v0, 63, v0")
    a.i(f"v_lshlrev_b32 v{V_L16}, 4, v0")
    a.i(f"v_lshlrev_b32 v{V_L8}, 3, v0")
    a.i(f"v_lshrrev_b32 v{S}, 3, v0")
    a.i(f"s_lshl_b32 s3, s{S_W}, 4")
    a.i(f"v_add_u32 v{S}, s3, v{S}")
    a.i(f"v_and_b32 v{S + 1}, 7, v0")
    a.i(f"v_lshrrev_b32 v{S + 2}, 4, v0")
    a.i(f"v_xor_b32 v{S + 3}, v{S + 1}, v{S + 2}")
    a.i(f"v_mul_u32_u24 v{S + 4}, 1152, v{S}")
    a.i(f"v_lshl_add_u32 v{XO}, v{S + 3}, 4, v{S + 4}")
    a.i(f"v_xor_b32 v{S + 3}, 4, v{S + 3}")
    a.i(f"v_lshl_add_u32 v{XO + 1}, v{S + 3}, 4, v{S + 4}")
    a.i(f"v_add_u32 v{XO + 1}, {8 * 1152 - 1024}, v{XO + 1}")
    a.i(f"v_and_b32 v{S + 2}, 1, v{S + 2}")
    a.i(f"v_lshlrev_b32 v{S + 2}, 2, v{S + 2}")
    a.i(f"v_xor_b32 v{S + 3}, v{S + 1}, v{S + 2}")
    a.i(f"v_lshl_add_u32 v{V_W2O}, v{S + 3}, 4, v{S + 4}")
    a.i(f"v_add_u32 v{V_W2O + 1}, {8 * 1152 - 1024}, v{V_W2O}")
    a.i(f"v_and_b32 v{S}, 63, v{S}")
    a.i(f"v_mul_u32_u24 v{S + 4}, 9216, v{S}")
    a.i(f"v_lshl_add_u32 v{V_W1O}, v{S + 3}, 4, v{S + 4}")
    a.i(f"v_add_u32 v{V_W1O + 1}, {8 * 9216 - 1024}, v{V_W1O}")
    a.i(f"s_lshl_b32 s3, s{S_W}, 7")
    a.i(f"v_lshl_add_u32 v{V_BT}, v0, 1, s3")
    a.c("transpose-read bases: i'=(l&15)>>2, c'=l&3, fb=(l>>4)&1, h=l>>5")
    a.i(f"v_bfe_u32 v{S}, v0, 2, 2")
    a.i(f"v_lshrrev_b32 v{S + 1}, 5, v0")
    a.i(f"v_lshrrev_b32 v{S + 2}, 1, v{S}")
    a.i(f"v_xor_b32 v{S + 2}, s{S_P}, v{S + 2}")
    a.i(f"v_lshlrev_b32 v{S + 2}, 6, v{S + 2}")
    a.i(f"v_bfe_u32 v{S + 3}, v0, 4, 1")
    a.i(f"v_lshl_add_u32 v{S + 2}, v{S + 3}, 5, v{S + 2}")
    a.i(f"v_and_b32 v{S + 3}, 3, v0")
    a.i(f"v_lshl_add_u32 v{S + 2}, v{S + 3}, 3, v{S + 2}")
    a.i(f"v_lshl_add_u32 v{S + 2}, v{S}, 7, v{S + 2}")
    a.i(f"v_lshl_add_u32 v{V_LW1}, v{S + 1}, 10, v{S + 2}")
    a.i(f"v_lshl_add_u32 v{V_LW2}, v{S + 1}, 9, v{S + 2}")
    a.i(f"v_add_u32 v{V_AW}, s{S_WL}, v{V_L16}")
    a.i(f"s_lshl_b32 s3, s{S_MQ}, 11")
    a.i(f"v_add_u32 v{V_AR}, s3, v{V_L16}")
    for base in (V_LW1, V_LW2, V_AW, V_AR):
        a.i(f"v_add_u32 v{base + 1}, 0x10000, v{base}")
        a.i(f"v_add_u32 v{base + 2}, 0x20000, v{base}")
    a.i(f"s_lshl_b32 s3, s{S_P}, 7")
    a.i(f"s_add_u32 s3, s3, {BIAS_UNIT * UNIT}")
    a.i(f"v_lshl_add_u32 v{V_BIAS}, v{S + 1}, 4, s3")
    a.c("x fragment read addresses")
    a.i(f"v_and_b32 v{S}, 31, v0")
    a.i(f"s_lshl_b32 s3, s{S_MQ}, 5")
    a.i(f"v_add_u32 v{S}, s3, v{S}")
    a.i(f"v_bfe_u32 v{S + 2}, v{S}, 1, 3")
    a.i(f"v_xor_b32 v{S + 1}, v{S + 2}, v{S + 1}")
    a.i(f"v_lshlrev_b32 v{S}, 7, v{S}")
    for k in range(4):
        a.i(f"v_xor_b32 v{S + 3}, {2 * k}, v{S + 1}")
        a.i(f"v_lshl_add_u32 v{XA + 3 * k}, v{S + 3}, 4, v{S}")
        a.i(f"v_add_u32 v{XA + 3 * k + 1}, 0x10000, v{XA + 3 * k}")
        a.i(f"v_add_u32 v{XA + 3 * k + 2}, 0x20000, v{XA + 3 * k}")
    a.i(f"s_lshl_b32 s3, s{S_W}, 8")
    a.i(f"s_add_u32 s3, s3, {BIAS_UNIT * UNIT}")
    a.i(f"v_lshl_add_u32 v{S + 4}, v0, 2, s3")
    a.c("partial base = (((mtile*12 + slice)*8 + w)*9)*2048")
    a.i(f"s_mul_i32 s{S_PB}, s{S_MT}, 12")
    a.i(f"s_add_u32 s{S_PB}, s{S_PB}, s{S_SL}")
    a.i(f"s_lshl_b32 s{S_PB}, s{S_PB}, 3")
    a.i(f"s_add_u32 s{S_PB}, s{S_PB}, s{S_W}")
    a.i(f"s_mul_i32 s{S_PB}, s{S_PB}, {9 * 2048}")
    if tail:
        a.c("flag line of (mtile, w); this wave's word; lane offsets of the final stage")
        a.i(f"s_lshl_b32 s{S_FL}, s{S_MT}, 3")
        a.i(f"s_add_u32 s{S_FL}, s{S_FL}, s{S_W}")
        a.i(f"s_lshl_b32 s{S_FL}, s{S_FL}, 7")
        a.i(f"s_add_u32 s{S_FL}, s{S_FL}, {WS_FLAG}")
        a.i(f"s_lshl_b32 s3, s{S_SL}, 2")
        a.i(f"s_add_u32 s{S_FW}, s{S_FL}, s3")
        a.i(f"v_min_u32 v{V_FA}, 11, v0")
        a.i(f"v_lshlrev_b32 v{V_FA}, 2, v{V_FA}")
        a.i(f"v_and_b32 v{S + 5}, 1, v0")
        a.i(f"v_lshrrev_b32 v{S + 6}, 1, v0")
        a.i(f"v_lshlrev_b32 v{V_AO}, 14, v{S + 5}")
        a.i(f"v_lshl_add_u32 v{V_AO}, v{S + 6}, 1, v{V_AO}")
        a.i(f"v_mul_u32_u24 v{V_OO}, 1152, v{S + 6}")
        a.i(f"v_lshl_add_u32 v{V_OO}, v{S + 5}, 3, v{V_OO}")
        a.i(f"v_lshlrev_b32 v{V_G}, 3, v{S + 6}")
        a.i(f"v_mov_b32 v{S + 5}, 0")
        a.c("reader base of the pieces: ((mtile*12*8 + w)*9 + (slice>>2))*2048 + (slice&3)*512")
        a.i(f"s_mul_i32 s{S_RB}, s{S_MT}, 96")
        a.i(f"s_add_u32 s{S_RB}, s{S_RB}, s{S_W}")
        a.i(f"s_mul_i32 s{S_RB}, s{S_RB}, {9 * 2048}")
        a.i(f"s_lshl_b32 s3, s{S_SL}, 9")
        a.i(f"s_add_u32 s{S_RB}, s{S_RB}, s3")
        a.c("first column of piece 0: 64*(slice>>2) + 32p + 8*(slice&3); first row 128*mtile + 32mq")
        a.i(f"s_lshr_b32 s{S_D0}, s{S_SL}, 2")
        a.i(f"s_lshl_b32 s{S_D0}, s{S_D0}, 6")
        a.i(f"s_and_b32 s3, s{S_SL}, 3")
        a.i(f"s_lshl_b32 s3, s3, 3")
        a.i(f"s_add_u32 s{S_D0}, s{S_D0}, s3")
        a.i(f"s_lshl_b32 s3, s{S_P}, 5")
        a.i(f"s_add_u32 s{S_D0}, s{S_D0}, s3")
        a.i(f"s_lshl_b32 s{S_T0}, s{S_MT}, 2")
        a.i(f"s_add_u32 s{S_T0}, s{S_T0}, s{S_MQ}")
        a.i(f"s_lshl_b32 s{S_T0}, s{S_T0}, 5")
    a.i(f"s_mul_i32 s{S_OFF}, s{S_MT}, {128 * 1152}")
    a.i(f"s_mul_i32 s3, s{S_SL}, 768")
    a.i("s_waitcnt lgkmcnt(0)")
    srd(a, R_X, P_U, S_OFF, 128 * 1152)
    srd(a, R_M, P_B1, 3, 768)
    srd(a, R_W1, P_W1, 3, 0)
    a.i(f"s_sub_u32 s{R_W1 + 2}, {576 * 9216}, s3")
    vm_bias = a.vm(f"buffer_load_ushort v{V_BT}, v{V_BT}, s[{R_M}:{R_M + 3}], 0 offen")
    srd(a, R_WS, P_WS, None, WS_USED)
    vm_reset = None
    if tail:
        a.i("s_mov_b64 exec, 1")
        vm_reset = a.vm(f"buffer_store_dword v{S + 5}, off, s[{R_WS}:{R_WS + 3}], s{S_FW}{SC1}")
        a.i("s_mov_b64 exec, -1")

    bars = list(range(0, TIGHT + 1, 8))
    bars += [36 * r + o for r in range(6) for o in cfg.get("bars1", [3, 15, 27]) if 36 * r + o > TIGHT + 3]
    bars += cfg.get("bars15", [219, 231, 243, 254, 264])
    bars += list(range(cfg.get("b2", 276), NK, cfg.get("sp", 12)))
    bars = sorted(set(bars))

    items = []
    Wst = [Item("W", i, i) for i in range(NK // 8)]
    Xp = [Item("X", j, j // 2) for j in range(9)]
    Act = [Item("A", r, (36 * (r + 1) + 22) // 8 + cfg.get("actlate", 2)) for r in range(6)]
    for s in range(NK // 8):
        items += [x for x in Xp if x.need == s]
        items += [x for x in Act if x.need == s]
        items.append(Wst[s])
    bias_item = Item("B", 0, 0)
    bias_item.unit = BIAS_UNIT
    free = list(range(9))
    nxt = [0]
    dma_q = []

    def dma_ops(it):
        if it.kind == "X":
            vo, r, so = XO, R_X, f"s_mov_b32 s{S_OFF}, {it.idx * 128}"
        elif it.idx < 27:
            rnd, d0 = (128 * it.idx) // 576, (128 * it.idx) % 576
            vo, r = V_W1O, R_W1
            so = f"s_add_u32 s{S_OFF}, s{S_DELTA if d0 + 128 > 576 else S_PN}, {d0 * 9216 + rnd * 128}"
        else:
            t, u = ORDER2[it.idx - 27]
            vo, r, so = V_W2O, R_W2, f"s_mov_b32 s{S_OFF}, {u * 128 * 1152 + t * 128}"
        skip = cfg.get("nodma") and it.need >= 3

        def first():
            if not skip:
                a.i(f"s_add_u32 m0, s{S_WL}, {it.unit * UNIT}")
                a.i(so)
                a.vm(f"buffer_load_dwordx4 v{vo}, s[{r}:{r + 3}], s{S_OFF} offen lds")

        def second():
            it.vm = 0 if skip else a.vm(f"buffer_load_dwordx4 v{vo + 1}, s[{r}:{r + 3}], s{S_OFF} offen offset:1024 lds")
        return [first, second]

    def allocate(maxiss):
        n = 0
        while nxt[0] < len(items) and free:
            it = items[nxt[0]]
            if it.kind != "A" and n >= maxiss:
                break
            it.unit = free.pop(0)
            nxt[0] += 1
            if it.kind != "A":
                dma_q.extend(dma_ops(it))
                n += 1

    allocate(99)
    for _ in range(6):
        dma_q.pop(0)()
    a.i(f"s_mul_i32 s3, s{S_SL}, {384 * 1152}")
    srd(a, R_W2, P_W2, 3, 384 * 1152)
    if tail:
        srd(a, R_OUT, P_OUT, None, 2048 * 1152)
        srd(a, R_M, P_DBG, None, 256)
    for _ in range(2 * PRE - 6):
        dma_q.pop(0)()
    stamp(1)
    a.wait(vm=vm_bias)
    a.i(f"v_lshlrev_b32 v{V_BT}, 16, v{V_BT}")
    bias_w = a.lds(f"ds_write_b32 v{S + 4}, v{V_BT}")

    wfrag_ld, xfrag_ld, afrag_ld, bias_ld = {}, {}, {}, {}
    act_written, act_visible = {}, {}
    rd_next = [0]
    last_mfma = {}
    pend_act_reads = list(range(24))
    tile_store_vm = {}
    all_items = items + [bias_item]
    dma_slots = set()
    groups = [] if cfg.get("nomish") else mish_groups()
    round_end = {}
    jobs = []
    urgent = []
    late_lds = []

    def read_w(k):
        it = Wst[k // 8]
        assert it.visible, (k, "W not visible")
        sg, off = seg(it.unit)
        buf = wbuf(k % NB)
        o = off + (k % 8) * 2048
        base, second = (V_LW1, 512) if k < NK1 else (V_LW2, 1024)
        a.lds(f"ds_read_b64_tr_b16 {vr(buf, 2)}, v{base + sg} offset:{o}")
        wfrag_ld[k] = a.lds(f"ds_read_b64_tr_b16 {vr(buf + 2, 2)}, v{base + sg} offset:{o + second}")
        if k % 8 == 7:
            it.last_read = wfrag_ld[k]
        if k < 36:
            x = Xp[k // 4]
            assert x.visible
            sg, off = seg(x.unit)
            xfrag_ld[k] = a.lds(f"ds_read_b128 {vr(V_X + 4 * k, 4)}, v{XA + 3 * (k % 4) + sg} offset:{off}")
            if k % 4 == 3:
                x.last_read = xfrag_ld[k]

    def read_bias(r):
        h = V_H + 16 * (r % 3)
        assert r < 3 or (r - 3) in act_written or cfg.get("nomish")
        def one(q):
            bias_ld[r] = a.lds(f"ds_read_b128 {vr(h + 4 * q, 4)}, v{V_BIAS} offset:{r * 256 + q * 32}")
            if r == 5 and q == 3:
                bias_item.last_read = bias_ld[r]
        for q in range(4):
            one(q) if r == 0 else late_lds.append(lambda q=q: one(q))

    def write_act(r, e):
        sg, off = seg(Act[r].unit)
        w = a.lds(f"ds_write_b128 v{V_AW + sg}, {vr(V_PK + 4 * e, 4)} offset:{off + 1024 * e}")
        if e == 1:
            act_written[r] = w

    def read_act(j):
        r, pp, e = j // 4, (j // 2) % 2, j % 2
        sg, off = seg(Act[r].unit)
        afrag_ld[j] = a.lds(f"ds_read_b128 {vr(V_X + 4 * j, 4)}, v{V_AR + sg} offset:{off + pp * 8192 + e * 1024}")
        if j % 4 == 3:
            Act[r].last_read = afrag_ld[j]

    def store_tile_ops(t):
        h = pbuf(t)
        ops = []
        for e in range(2):
            for i in range(4):
                ops.append(f"v_cvt_pk_bf16_f32 v{V_PK + 4 * e + i}, v{h + 8 * e + 2 * i}, v{h + 8 * e + 2 * i + 1}")
        ops.append(f"s_add_u32 s{S_SO}, s{S_PB}, {t * 2048}")
        for e in range(2):
            ops.append(f"v_permlane32_swap_b32 v{V_PK + 4 * e}, v{V_PK + 4 * e + 2}")
            ops.append(f"v_permlane32_swap_b32 v{V_PK + 4 * e + 1}, v{V_PK + 4 * e + 3}")

        def st(e):
            def f():
                tile_store_vm[t] = a.vm(f"buffer_store_dwordx4 {vr(V_PK + 4 * e, 4)}, v{V_L16}, s[{R_WS}:{R_WS + 3}], s{S_SO} offen offset:{1024 * e}{SC1}")
            return f
        return ops + [st(0), st(1)]

    nspin = [0]

    def check(load, vexp):
        nspin[0] += 1
        n = nspin[0]
        a.i(f"v_cmp_le_u32 vcc, {vexp}, v{V_BT}")
        a.i("s_cmp_eq_u64 vcc, exec")
        a.i(f"s_cbranch_scc0 L_spin{n}")
        a.label(f"L_ret{n}")
        ool.append(f"""L_spin{n}:
    s_mov_b32 s{S_CNT}, 0
L_spin{n}_l:
    {load}
    s_add_u32 s{S_CNT}, s{S_CNT}, 1
    s_waitcnt vmcnt(0)
    v_cmp_le_u32 vcc, {vexp}, v{V_BT}
    s_cmp_eq_u64 vcc, exec
    s_cbranch_scc1 L_ret{n}
    s_cmp_lt_u32 s{S_CNT}, {SPIN_MAX}
    s_cbranch_scc1 L_spin{n}_l
    s_branch L_ret{n}""")

    LD_CNT = f"buffer_load_dword v{V_BT}, off, s[{R_M}:{R_M + 3}], 0{SC1}"
    LD_FLAG = f"buffer_load_dword v{V_BT}, v{V_FA}, s[{R_WS}:{R_WS + 3}], s{S_FL} offen{SC1}"
    LD_OTH = f"buffer_load_dword v{V_BT}, v{V_FE}, s[{R_WS}:{R_WS + 3}], 0 offen{SC1}"

    def publish(sig):
        a.i(f"v_mov_b32 v{V_DUMMY}, {sig + 1}")
        a.i("s_mov_b64 exec, 1")
        a.vm(f"buffer_store_dword v{V_DUMMY}, off, s[{R_WS}:{R_WS + 3}], s{S_FW}{SC1}")
        a.i("s_mov_b64 exec, -1")

    piece_vm = {}

    def piece_loads(sig):
        ops = []
        for s in range(12):
            def f(s=s):
                a.i(f"s_add_u32 s{S_SO2}, s{S_RB}, {s * 8 * 9 * 2048 + sig * 3 * 2048}")
                piece_vm[(sig, s)] = a.vm(f"buffer_load_dwordx2 {vr(V_RD + 2 * s, 2)}, v{V_L8}, s[{R_WS}:{R_WS + 3}], s{S_SO2} offen{SC1}")
            ops.append(f)
        return ops

    def piece_sum(sig):
        b = V_B + 4 * sig
        ops = []
        for s in range(12):
            r = V_RD + 2 * s
            ops.append(lambda s=s: a.wait(vm=piece_vm[(sig, s)]))
            if s == 0:
                ops += [f"v_lshlrev_b32 v{b}, 16, v{r}", f"v_and_b32 v{b + 1}, 0xffff0000, v{r}",
                        f"v_lshlrev_b32 v{b + 2}, 16, v{r + 1}", f"v_and_b32 v{b + 3}, 0xffff0000, v{r + 1}"]
            else:
                ops += [f"v_lshlrev_b32 v{T}, 16, v{r}", f"v_and_b32 v{T + 1}, 0xffff0000, v{r}",
                        f"v_lshlrev_b32 v{T + 2}, 16, v{r + 1}", f"v_and_b32 v{T + 3}, 0xffff0000, v{r + 1}"]
                ops += [f"v_add_f32 v{b + i}, v{b + i}, v{T + i}" for i in range(4)]
        return ops

    ag_vm = {}

    def ag_loads():
        ops = [f"v_mov_b32 v{V_A + i}, 0" for i in range(12)]
        ops.append(f"s_lshl_b32 s{S_SO2}, s{S_T0}, 3")
        ops.append(f"s_add_u32 s{S_SO2}, s{S_SO2}, {WS_G}")
        ops.append(lambda: a.vm(f"buffer_load_dwordx2 {vr(V_G, 2)}, v{V_G}, s[{R_WS}:{R_WS + 3}], s{S_SO2} offen{SC1}"))
        ops.append(f"s_lshl_b32 s{S_AB}, s{S_D0}, 12")
        ops.append(f"s_lshl_b32 s3, s{S_T0}, 1")
        ops.append(f"s_add_u32 s{S_AB}, s{S_AB}, s3")
        for sig in range(3):
            for i in range(4):
                def f(sig=sig, i=i):
                    a.i(f"s_add_u32 s{S_SO2}, s{S_AB}, {WS_AT + (192 * sig + i) * 4096}")
                    ag_vm[0] = a.vm(f"buffer_load_short_d16_hi v{V_A + 4 * sig + i}, v{V_AO}, s[{R_WS}:{R_WS + 3}], s{S_SO2} offen{SC1}")
                ops.append(f)
        return ops

    def combine_ops(sig):
        b, x = V_B + 4 * sig, V_A + 4 * sig
        ops = [lambda: a.wait(vm=ag_vm[0])]
        ops += [f"v_mul_f32 v{b + i}, v{V_G + 1}, v{b + i}" for i in range(4)]
        ops += [f"v_fmac_f32 v{b + i}, v{V_G}, v{x + i}" for i in range(4)]
        ops += [f"s_mul_i32 s{S_SO2}, s{S_T0}, 1152", f"s_lshl_b32 s3, s{S_D0}, 1", f"s_add_u32 s{S_SO2}, s{S_SO2}, s3"]
        ops += [f"v_cvt_pk_bf16_f32 v{b}, v{b}, v{b + 1}", f"v_cvt_pk_bf16_f32 v{b + 1}, v{b + 2}, v{b + 3}"]
        ops.append(lambda: a.vm(f"buffer_store_dwordx2 {vr(b, 2)}, v{V_OO}, s[{R_OUT}:{R_OUT + 3}], s{S_SO2} offen offset:{384 * sig}"))
        return ops

    def run(ops):
        for op in ops:
            op() if callable(op) else a.i(op)

    poll = {}
    events = []
    if tail:
        def ev_count_load():
            poll["c"] = a.vm(LD_CNT)

        def ev_count_check():
            a.wait(vm=poll["c"])
            check(LD_CNT, str(cfg.get("nwg", 256)))

        def mk_flag_load():
            def f():
                poll["f"] = a.vm(LD_FLAG)
            return f

        def mk_flag_check(sig, k):
            def f():
                a.wait(vm=poll["f"])
                check(LD_FLAG, str(sig + 1))
                jobs.append([k, 1, piece_loads(sig)])
            return f

        def ev_oth_load():
            poll["o"] = a.vm(LD_OTH)

        def mk_oth_check(k):
            def f():
                a.wait(vm=poll["o"])
                check(LD_OTH, "1")
                jobs.append([k, 2, ag_loads()])
            return f
        def mk_publish(sig):
            def f():
                a.wait(vm=tile_store_vm[3 * sig + 2])
                publish(sig)
            return f
        at = dict(cl=200, cc=240, pb0=308, fl0=332, fc0=344, sm0=366, pb1=380, fl1=392, fc1=402, sm1=421)
        at.update(cfg.get("ev", {}))
        events = [(at["cl"], ev_count_load), (at["cc"], ev_count_check)]
        for sig in range(2):
            events += [(at[f"pb{sig}"], mk_publish(sig)), (at[f"fl{sig}"], mk_flag_load()),
                       (at[f"fc{sig}"], mk_flag_check(sig, at[f"fc{sig}"])),
                       (at[f"sm{sig}"], lambda sig=sig: jobs.append([at[f"sm{sig}"], 5, piece_sum(sig)]))]
        events.sort(key=lambda e: e[0])

    def barrier(b):
        nb = min([x for x in bars if x > b], default=NK)
        upto = min(nb - 2 + PF, NK - 1) // 8 if b >= TIGHT else (nb - 1) // 8
        need = [it for it in items if it.kind != "A" and it.need <= upto and not it.visible]
        while any(it.vm is None for it in need):
            if not dma_q:
                allocate(1)
            assert dma_q, ("item not issued in time", b)
            if cfg.get("verbose"):
                print("late DMA at barrier", b)
            dma_q.pop(0)()
        vmw = max([it.vm for it in need], default=None)
        ldw = bias_w if b == 0 else None
        for r, w in act_written.items():
            if r not in act_visible:
                ldw = max(ldw or 0, w)
        a.wait(lds=ldw, vm=vmw)
        rel = [it for it in all_items if it.last_read is not None and not it.freed and it.last_read <= a.lds_done]
        a.i("s_barrier")
        for it in need:
            it.visible = True
        for r in act_written:
            act_visible[r] = True
        for it in rel:
            it.freed = True
            free.append(it.unit)
        if b < TIGHT:
            allocate(3)
            dma_slots.update(range(b, nb))
        else:
            allocate(0)

    last_dma = [-99]

    def dma_slot(k):
        if k < TIGHT:
            if dma_q:
                dma_q.pop(0)()
            return
        gap = 4
        for lo, hi, g in cfg.get("gaps", [[32, 44, 2], [196, 270, 3]]):
            if lo <= k < hi:
                gap = g
        due = k - last_dma[0] >= gap
        if not due or (k in bars and not cfg.get("dpost")):
            return
        if not dma_q:
            allocate(1)
        if dma_q:
            dma_q.pop(0)()
            last_dma[0] = k if k - last_dma[0] > gap + 1 else last_dma[0] + gap

    def fill(k):
        n = 1
        if k >= NK1 + 2 and groups:
            left = len([kk for kk in range(k, cfg.get("mend", 262) + 1) if (kk + 1) not in bars])
            n = -(-len(groups) // max(left, 1))
        while groups and n > 0:
            start, ops, fin = groups[0]
            if start is not None:
                if start not in round_end or k < round_end[start] + 3:
                    break
                a.dist(last_mfma[round_end[start]], 12)
            groups.pop(0)
            run(ops)
            if fin is not None:
                late_lds.append(lambda fin=fin: write_act(*fin))
            n -= 1
        J = urgent if urgent and urgent[0][0] <= k else jobs
        if J and J[0][0] <= k:
            _, budget, q = J[0]
            while q and budget > 0:
                op = q.pop(0)
                before = a.n_ins
                op() if callable(op) else a.i(op)
                budget -= 1 if a.n_ins > before else 0
            if not q:
                J.pop(0)

    for k in range(NK):
        if k in bars:
            if k in wfrag_ld:
                a.wait(lds=wfrag_ld[k])
            barrier(k)
            if k == 0:
                stamp(2)
                read_bias(0)
        if k in STK:
            stamp(STK[k])
        while rd_next[0] < min(k + (PF if k in bars and k <= TIGHT else 1), NK) and Wst[rd_next[0] // 8].visible:
            read_w(rd_next[0]); rd_next[0] += 1
        buf = wbuf(k % NB)
        if k < NK1:
            r, ks = k // 36, k % 36
            h = V_H + 16 * (r % 3)
            w = wfrag_ld[k]
            if k < 36:
                w = max(w, xfrag_ld[k])
            if ks == 0:
                w = max(w, bias_ld[r])
            a.wait(lds=w)
            last_mfma[k] = a.i(f"v_mfma_f32_32x32x16_bf16 {vr(h, 16)}, {vr(buf, 4)}, {vr(V_X + 4 * ks, 4)}, {vr(h, 16)}")
            if ks == 35:
                round_end[r] = k
                if cfg.get("nomish"):
                    jobs.append([k + 40 if r < 5 else k + 20, 1, [lambda r=r: (write_act(r, 0), write_act(r, 1))]])
        else:
            t, u = ORDER2[(k - NK1) // 8]
            j = 8 * u + (k - NK1) % 8
            h = pbuf(t)
            a.wait(lds=max(wfrag_ld[k], afrag_ld[j]))
            if j == 0:
                assert all(tt in tile_store_vm for tt in range(t) if pbuf(tt) == h)
                assert all(r in act_written for r in range(6) if V_H + 16 * (r % 3) == h)
            cin = "0" if j == 0 else vr(h, 16)
            last_mfma[k] = a.i(f"v_mfma_f32_32x32x16_bf16 {vr(h, 16)}, {vr(buf, 4)}, {vr(V_X + 4 * j, 4)}, {cin}")
            if j == 23 and t < 8:
                urgent.append([k + 3, 4, [lambda kk=k: a.dist(last_mfma[kk], 12)] + store_tile_ops(t)])
        if (k + 1) in bars and k > TIGHT:
            continue
        fill(k)
        while rd_next[0] <= k + PF and rd_next[0] < NK and Wst[rd_next[0] // 8].visible and (rd_next[0] >= 36 or Xp[rd_next[0] // 4].visible):
            read_w(rd_next[0]); rd_next[0] += 1
        if k < NK1 and k % 36 == 28 and k // 36 < 5:
            read_bias(k // 36 + 1)
        if late_lds:
            late_lds.pop(0)()
        n = 0
        while pend_act_reads and n < (1 if k < 250 else 2):
            j = pend_act_reads[0]
            if k >= 180 + j and act_visible.get(j // 4):
                read_act(j); pend_act_reads.pop(0); n += 1
            else:
                break
        dma_slot(k)
        if tail:
            if k == 2:
                a.c("all flag words of this workgroup are reset: count it (wave 0)")
                assert vm_reset <= a.vm_done
                a.i(f"s_cmp_lg_u32 s{S_W}, 0")
                a.i("s_cbranch_scc1 L_mlp_counted")
                a.i(f"v_mov_b32 v{V_DUMMY}, 1")
                a.i("s_mov_b64 exec, 1")
                a.i(f"buffer_atomic_add v{V_DUMMY}, off, s[{R_M}:{R_M + 3}], 0{SC1}")
                a.i("s_mov_b64 exec, -1")
                a.label("L_mlp_counted")
            while events and events[0][0] <= k:
                events.pop(0)[1]()
                jobs.sort(key=lambda x: x[0])
    assert not urgent and not groups and not dma_q and not pend_act_reads and not events
    if tail:
        a.c("flags of the convolution and gate workgroups")
        a.i(f"v_lshlrev_b32 v{V_FE}, 7, v0")
        a.i(f"v_add_u32 v{V_FE}, {WS_FLAG2}, v{V_FE}")
        poll["o"] = a.vm(LD_OTH)
    a.dist(last_mfma[NK - 1], 12)
    run(store_tile_ops(8))
    stamp(7)
    while jobs:
        run(jobs.pop(0)[2])
    if tail:
        a.wait(vm=poll["o"])
        check(LD_OTH, "1")
        run(ag_loads())
        a.wait(vm=tile_store_vm[8])
        publish(2)
        poll["f"] = a.vm(LD_FLAG)
        run(combine_ops(0))
        run(combine_ops(1))
        a.wait(vm=poll["f"])
        check(LD_FLAG, "3")
        run(piece_loads(2))
        run(piece_sum(2))
        run(combine_ops(2))
    if stamps:
        a.wait_all_vm()
        stamp(8)
        emit_stamps(a, 9)
    a.i("s_endpgm")
    for o in ool:
        a.raw(o)
    a.label("L_mlp_end")
```

```python
KNAME = "gated_mix__ssm_conv_s4__dense_activation_mish__prompt_kernel"
R_X, R_W1, R_W2, R_WS, R_OUT, R_M = 4, 8, 12, 16, 20, 24
S_W, S_MQ, S_P, S_MT, S_SL, S_WL, S_DELTA, S_OFF, S_LOG2E, S_PB, S_SO = 28, 29, 30, 31, 32, 33, 34, 35, 36, 37, 38
S_XCD, S_J, S_PN = 39, 74, 75
S_PC = 76
S_FL, S_FW = 98, 99
S_RB, S_D0, S_T0 = 39, 74, 76
S_AB, S_CNT, S_SO2 = 42, 43, 44
SPIN_MAX = 1 << 16
P_U, P_ARE, P_AIM, P_BRE, P_BIM, P_CRE, P_CIM, P_LDT = 40, 42, 44, 46, 48, 50, 52, 54
P_DSK, P_BX, P_W1, P_B1, P_W2, P_GW, P_OUT, P_DBG, P_WS = 56, 58, 60, 62, 64, 66, 68, 70, 72
S_STAMP = 80
WS_PART = 0
WS_AT = 16 * 12 * 8 * 9 * 2048
WS_G = WS_AT + 576 * 2048 * 2
WS_FLAG = WS_G + 2048 * 8
WS_FLAG2 = WS_FLAG + 128 * 128
WS_STAMP = WS_FLAG + 65536
WS_USED = WS_STAMP + 256 * 8 * 128


def stamp(a, k):
    a.i("s_memtime s[78:79]")
    a.i("s_memrealtime s[100:101]")
    a.wait_all_lds()
    a.i(f"s_mov_b32 s{S_STAMP + 2 * k}, s78")
    a.i(f"s_mov_b32 s{S_STAMP + 2 * k + 1}, s100")


def emit_stamps(a, n):
    a.i(f"s_lshl_b32 s3, s2, 3")
    a.i(f"s_add_u32 s3, s3, s{S_W}")
    a.i(f"s_lshl_b32 s3, s3, 7")
    a.i(f"s_add_u32 s3, s3, {WS_STAMP}")
    a.i("v_mov_b32 v0, 0")
    for k in range(n):
        a.i(f"v_mov_b32 v2, s{S_STAMP + 2 * k}")
        a.i(f"v_mov_b32 v3, s{S_STAMP + 2 * k + 1}")
        a.vm(f"buffer_store_dwordx2 v[2:3], v0, s[{R_WS}:{R_WS + 3}], s3 offen offset:{8 * k}")
        a.i("s_nop 1")
    a.wait_all_vm()
```

```python
import sys, json
from asmlib import *
from layout import *
import gen_mlp

def build(cfg):
    a = Asm()
    ref = open("gated_mix__ssm_conv_s4__dense_activation_mish__prompt.s.ref").read().split("\n")
    for l in ref:
        if l.startswith(";") and "@launch" not in l and "Override" not in l and "grid=ceil" not in l:
            a.raw(l)
        if not l.startswith(";"):
            break
    a.raw("; @launch grid=(256,1,1) block=(512,1,1) lds=163840")
    a.raw('.amdgcn_target "amdgcn-amd-amdhsa--gfx950"')
    a.raw(".text")
    a.raw(f".globl {KNAME}")
    a.raw(".p2align 8")
    a.raw(f".type {KNAME},@function")
    a.label(KNAME)
    if cfg.get("stamps"):
        stamp(a, 0)
    a.i("s_cmp_ge_u32 s2, 256")
    a.i("s_cbranch_scc1 L_exit")
    a.i("s_load_dwordx16 s[40:55], s[0:1], 0")
    a.i("s_load_dwordx16 s[56:71], s[0:1], 64")
    a.i("s_load_dwordx2 s[72:73], s[0:1], 128")
    a.i("v_lshrrev_b32 v1, 6, v0")
    a.i(f"s_and_b32 s{S_XCD}, s2, 7")
    a.i(f"v_readfirstlane_b32 s{S_W}, v1")
    a.i(f"s_lshr_b32 s{S_J}, s2, 3")
    a.i(f"s_cmp_lt_u32 s{S_J}, 24")
    a.i("s_cbranch_scc1 L_mlp")
    if cfg.get("conv"):
        a.i("s_branch L_conv")
    a.label("L_exit")
    a.i("s_endpgm")
    gen_mlp.gen_mlp(a, cfg)
    if cfg.get("conv"):
        import gen_conv
        gen_conv.gen_conv(a, cfg)
    a.raw('.section .rodata,"a"')
    a.raw(".p2align 6")
    a.raw(f""".amdhsa_kernel {KNAME}
  .amdhsa_next_free_vgpr 256
  .amdhsa_next_free_sgpr 102
  .amdhsa_accum_offset 256
  .amdhsa_group_segment_fixed_size 0
  .amdhsa_kernarg_size 136
  .amdhsa_user_sgpr_count 2
  .amdhsa_user_sgpr_kernarg_segment_ptr 1
  .amdhsa_system_sgpr_workgroup_id_x 1
.end_amdhsa_kernel""")
    return a.text()

if __name__ == "__main__":
    out = sys.argv[1]
    cfg = json.loads(sys.argv[2]) if len(sys.argv) > 2 else {}
    open(out, "w").write(build(cfg))
```

```python
from asmlib import *
from layout import *
from gen_mlp import srd
import layout

SC1 = " sc1"
UT_CH = 4608
L_UT = 0
K_COPY = 4160
K_BUF = 2 * K_COPY
L_K = 9 * UT_CH
L_D9 = L_K + 9 * K_BUF
S_CW, S_CH, S_KB = 29, 31, 32
S_C1, S_C2, S_C3, S_C4, S_C5, S_C6, S_C7, S_C8 = 33, 34, 35, 36, 37, 38, 98, 30


def flag_reset(a, idx_sgpr, vtmp):
    a.i(f"s_lshl_b32 s{S_FW}, s{idx_sgpr}, 7")
    a.i(f"s_add_u32 s{S_FW}, s{S_FW}, {WS_FLAG2}")
    a.i(f"s_cmp_lg_u32 s{S_W}, 0")
    lab = f"L_rst{a.n_ins}"
    a.i(f"s_cbranch_scc1 {lab}")
    a.i(f"v_mov_b32 v{vtmp}, 0")
    a.i("s_mov_b64 exec, 1")
    a.i(f"buffer_store_dword v{vtmp}, off, s[{R_WS}:{R_WS + 3}], s{S_FW}{SC1}")
    a.i("s_mov_b64 exec, -1")
    a.label(lab)
    return a.n_vm


def flag_count(a, vtmp, mark):
    a.i(f"s_cmp_lg_u32 s{S_W}, 0")
    lab = f"L_cnt{a.n_ins}"
    a.i(f"s_cbranch_scc1 {lab}")
    a.i(f"s_waitcnt vmcnt({a.n_vm - mark})")
    a.i(f"v_mov_b32 v{vtmp}, 1")
    a.i("s_mov_b64 exec, 1")
    a.i(f"buffer_atomic_add v{vtmp}, off, s[{R_OUT}:{R_OUT + 3}], 0{SC1}")
    a.i("s_mov_b64 exec, -1")
    a.label(lab)


def flag_set(a, vtmp):
    a.i(f"v_mov_b32 v{vtmp}, 1")
    a.i("s_mov_b64 exec, 1")
    a.i(f"buffer_store_dword v{vtmp}, off, s[{R_WS}:{R_WS + 3}], s{S_FW}{SC1}")


def gen_conv(a, cfg):
    stamps = cfg.get("stamps", False)

    def stamp(k):
        if stamps:
            layout.stamp(a, k)

    a.label("L_conv")
    a.i("s_load_dwordx2 s[42:43], s[0:1], 8")
    a.i("s_load_dwordx4 s[44:47], s[0:1], 16")
    a.i("s_load_dwordx8 s[48:55], s[0:1], 32")
    a.i("s_load_dwordx2 s[56:57], s[0:1], 64")
    if cfg.get("codepf", True):
        a.i(f"s_getpc_b64 s[{S_PC}:{S_PC + 1}]")
        a.label("L_conv_pc")
        a.i("v_lshlrev_b32 v2, 7, v0")
        a.i("v_min_u32 v2, L_conv_end-L_conv_pc-4, v2")
        a.vm(f"global_load_dword v2, v2, s[{S_PC}:{S_PC + 1}]")
    VTF, VTG = 5, 6
    VPR, VPW, VPS = 9, 10, 11
    VT0, VT1A, VT1B, VT2 = 12, 13, 14, 15
    VE0, VE0P, VE1, VE1P, VE2, VE3 = 16, 17, 18, 19, 20, 21
    VKW, VSEL, VL4, VUW, VUO, VGO, VPF = 22, 23, 24, 25, 26, 27, 28
    VA0, VB0, VO = 30, 34, 35
    VIN = 36
    VP = 52
    VE, VH = 84, 88
    VD, VD9 = 100, 112
    T = 124
    U = 144
    GX, GW = 168, 186
    A = [64, 96]
    B = [128, 160]
    Y = 192
    a.i(f"s_lshl_b32 s{S_CW}, s{S_XCD}, 3")
    a.i(f"s_add_u32 s{S_CW}, s{S_CW}, s{S_J}")
    a.i(f"s_sub_u32 s{S_CW}, s{S_CW}, 24")
    a.i(f"v_mul_u32_u24 v{VUO}, {4 * 1152}, v0")
    a.i(f"v_lshrrev_b32 v{VUW}, 1, v0")
    a.i(f"v_and_b32 v{T}, 1, v0")
    a.i(f"v_xor_b32 v{T}, 1, v{T}")
    a.i(f"v_lshlrev_b32 v{T}, 3, v{T}")
    a.i(f"v_lshl_add_u32 v{VUW}, v{VUW}, 4, v{T}")
    a.i(f"s_sub_u32 s3, s{S_J}, 24")
    a.i(f"s_lshl_b32 s3, s3, 9")
    a.i(f"v_add_u32 v{VPF}, s3, v0")
    a.i("v_and_b32 v0, 63, v0")
    a.i("v_and_b32 v3, 15, v0")
    a.i("v_lshrrev_b32 v4, 4, v0")
    a.i(f"v_lshlrev_b32 v{VL4}, 2, v0")
    a.c("tau values: F = 8r; G0 = 128*(r>>3) + (r&7); G1 = two finer levels; G2 = 1024 + 128r")
    a.i(f"v_lshlrev_b32 v{T}, 3, v3")
    a.i(f"v_cvt_f32_u32 v{VTF}, v{T}")
    a.i(f"v_lshrrev_b32 v{T}, 3, v3")
    a.i(f"v_and_b32 v{T + 1}, 7, v3")
    a.i(f"v_lshl_add_u32 v{T + 2}, v{T}, 7, v{T + 1}")
    a.i(f"v_cvt_f32_u32 v{VTG}, v{T + 2}")
    a.i(f"v_lshrrev_b32 v{T + 2}, 2, v3")
    a.i(f"v_and_b32 v{T + 3}, 3, v3")
    a.i(f"v_lshlrev_b32 v{T + 3}, 1, v{T + 3}")
    a.i(f"v_lshl_add_u32 v{T + 2}, v{T + 2}, 7, v{T + 3}")
    a.i(f"v_add_u32 v{T + 2}, 256, v{T + 2}")
    a.i(f"v_lshrrev_b32 v{T + 3}, 1, v3")
    a.i(f"v_and_b32 v{T + 4}, 1, v3")
    a.i(f"v_lshlrev_b32 v{T + 4}, 2, v{T + 4}")
    a.i(f"v_cmp_gt_u32 vcc, 8, v3")
    a.i(f"v_lshl_add_u32 v{T + 3}, v{T + 3}, 7, v{T + 4}")
    a.i(f"v_lshlrev_b32 v{T + 4}, 7, v3")
    a.i(f"v_cndmask_b32 v{T + 2}, v{T + 3}, v{T + 2}, vcc")
    a.i(f"v_cvt_f32_u32 v{VTG + 1}, v{T + 2}")
    a.i(f"v_add_u32 v{T + 4}, 1024, v{T + 4}")
    a.i(f"v_cvt_f32_u32 v{VTG + 2}, v{T + 4}")
    a.c("LDS addresses")
    a.i(f"s_mul_i32 s{S_KB}, s{S_W}, {K_BUF}")
    a.i(f"s_add_u32 s{S_KB}, s{S_KB}, {L_K}")
    a.i(f"v_lshl_add_u32 v{VPR}, v4, 6, s{S_KB}")
    a.i(f"v_lshl_add_u32 v{VPW}, v0, 5, s{S_KB}")
    a.i(f"s_lshl_b32 s3, s{S_W}, 8")
    a.i(f"s_add_u32 s3, s3, 2048")
    a.i(f"v_add_u32 v{VPS}, s3, v{VPR}")
    a.i(f"s_add_u32 s{S_C1}, s{S_KB}, 4608")
    a.i(f"v_lshrrev_b32 v{T}, 1, v4")
    a.i(f"v_and_b32 v{T + 1}, 1, v4")
    a.i(f"v_lshlrev_b32 v{T + 2}, 4, v3")
    a.i(f"v_lshl_add_u32 v{T + 2}, v{T}, 8, v{T + 2}")
    a.i(f"v_lshl_add_u32 v{T + 2}, v{T + 1}, 3, v{T + 2}")
    a.i(f"v_add_u32 v{VT0}, s{S_C1}, v{T + 2}")
    a.i(f"v_lshlrev_b32 v{T + 2}, 3, v3")
    a.i(f"v_lshlrev_b32 v{T + 3}, 2, v3")
    a.i(f"v_cmp_gt_u32 vcc, 2, v4")
    a.i(f"v_mov_b32 v{T + 4}, 64")
    a.i(f"s_add_u32 s3, s{S_C1}, 512")
    a.i(f"v_cndmask_b32 v{T + 2}, v{T + 3}, v{T + 2}, vcc")
    a.i(f"v_cndmask_b32 v{T + 4}, v{T + 4}, 4, vcc")
    a.i(f"v_lshl_add_u32 v{T + 2}, v4, 7, v{T + 2}")
    a.i(f"v_add_u32 v{VT1A}, s3, v{T + 2}")
    a.i(f"v_add_u32 v{VT1B}, v{VT1A}, v{T + 4}")
    a.i(f"v_lshlrev_b32 v{T + 2}, 1, v3")
    a.i(f"v_lshl_add_u32 v{T + 2}, v4, 7, v{T + 2}")
    a.i(f"s_add_u32 s3, s{S_C1}, 1024")
    a.i(f"v_add_u32 v{VT2}, s3, v{T + 2}")
    a.i(f"v_lshl_add_u32 v{VE0}, v0, 4, s{S_C1}")
    a.i(f"v_max_u32 v{T + 2}, 1, v0")
    a.i(f"v_lshl_add_u32 v{VE0P}, v{T + 2}, 4, s{S_C1}")
    a.i(f"v_add_u32 v{VE0P}, -2, v{VE0P}")
    a.i(f"s_add_u32 s3, s{S_C1}, 512")
    a.i(f"v_lshl_add_u32 v{VE1}, v0, 3, s3")
    a.i(f"v_min_u32 v{T + 2}, 1, v0")
    a.i(f"v_lshl_add_u32 v{T + 2}, v{T + 2}, 1, v{VE1}")
    a.i(f"v_add_u32 v{VE1P}, -2, v{T + 2}")
    a.i(f"s_add_u32 s3, s{S_C1}, 768")
    a.i(f"v_lshl_add_u32 v{VE2}, v0, 2, s3")
    a.i(f"s_add_u32 s3, s{S_C1}, 1024")
    a.i(f"v_lshl_add_u32 v{VE3}, v0, 1, s3")
    a.i(f"v_lshl_add_u32 v{VKW}, v0, 4, s{S_KB}")
    a.i(f"v_and_b32 v{T + 2}, 1, v0")
    a.i(f"v_cmp_eq_u32 vcc, 0, v{T + 2}")
    a.i(f"v_mov_b32 v{T + 2}, 0x05040504")
    a.i(f"v_mov_b32 v{T + 3}, 0x05040100")
    a.i(f"v_cndmask_b32 v{VSEL}, v{T + 2}, v{T + 3}, vcc")
    a.c("Toeplitz read base: i0 = 16*(q>>1) - 8*(q&1) + r - 7; copy = i0 & 1")
    a.i(f"v_lshl_add_u32 v{T + 2}, v{T}, 4, v3")
    a.i(f"v_lshlrev_b32 v{T + 3}, 3, v{T + 1}")
    a.i(f"v_sub_u32 v{T + 2}, v{T + 2}, v{T + 3}")
    a.i(f"v_add_u32 v{T + 2}, 9, v{T + 2}")
    a.i(f"v_and_b32 v{T + 3}, 1, v{T + 2}")
    a.i(f"v_add_u32 v{T + 2}, v{T + 2}, v{T + 3}")
    a.i(f"v_mul_u32_u24 v{T + 3}, {K_COPY}, v{T + 3}")
    a.i(f"v_lshl_add_u32 v{T + 2}, v{T + 2}, 1, v{T + 3}")
    a.i(f"v_add_u32 v{VA0}, s{S_KB}, v{T + 2}")
    for k in range(1, 4):
        a.i(f"v_add_u32 v{VA0 + k}, {1024 * k}, v{VA0}")
    a.c("sample read base: 2*(16c - 16*(q>>1) + 8*(q&1)) + 32")
    a.i(f"v_sub_u32 v{T + 2}, v3, v{T}")
    a.i(f"v_lshlrev_b32 v{T + 2}, 5, v{T + 2}")
    a.i(f"v_lshl_add_u32 v{T + 2}, v{T + 1}, 4, v{T + 2}")
    a.i(f"s_mul_i32 s3, s{S_W}, {UT_CH}")
    a.i(f"s_add_u32 s3, s3, {L_UT + 32}")
    a.i(f"v_add_u32 v{VB0}, s3, v{T + 2}")
    a.i(f"v_lshlrev_b32 v{VO}, 5, v3")
    a.i(f"v_lshl_add_u32 v{VO}, v4, 3, v{VO}")
    a.i(f"v_mul_u32_u24 v{VGO}, 1152, v4")
    a.i(f"v_lshl_add_u32 v{VGO}, v3, 3, v{VGO}")
    a.c("zero: pads in front of the samples, the two accumulation areas")
    for i in range(4):
        a.i(f"v_mov_b32 v{T + 4 + i}, 0")
    a.i(f"v_cmp_gt_u32 vcc, 32, v0")
    a.i(f"s_mul_i32 s3, s{S_W}, {UT_CH}")
    a.i(f"v_mov_b32 v{T + 2}, {8 * UT_CH - 512}")
    a.i(f"v_mov_b32 v{T + 3}, s3")
    a.i(f"v_cndmask_b32 v{T + 2}, v{T + 2}, v{T + 3}, vcc")
    a.i(f"v_lshl_add_u32 v{T + 2}, v0, 4, v{T + 2}")
    a.lds(f"ds_write_b128 v{T + 2}, {vr(T + 4, 4)} offset:{L_UT}")
    a.i(f"s_mul_i32 s{S_CH}, s{S_CW}, 9")
    a.i(f"s_add_u32 s3, s{S_CH}, s{S_W}")
    a.i(f"s_lshl_b32 s{S_C8}, s3, 12")
    a.i(f"s_add_u32 s{S_C8}, s{S_C8}, {WS_AT}")
    a.i(f"v_mov_b32 v{T + 1}, s3")
    a.i(f"s_add_u32 s3, s{S_CH}, 8")
    a.i(f"v_mov_b32 v{T + 3}, s3")
    for o in (0, 2):
        a.i(f"v_lshl_add_u32 v{T + o}, v{T + o + 1}, 8, v{VL4}")
        a.i(f"v_lshlrev_b32 v{T + o + 1}, 1, v{T + o + 1}")
    a.wait_all_lds()
    for n in range(2):
        for k, p in enumerate((P_ARE, P_AIM, P_BRE, P_BIM, P_CRE, P_CIM)):
            a.vm(f"global_load_dword v{VIN + 8 * n + k}, v{T + 2 * n}, s[{p}:{p + 1}]")
        a.vm(f"global_load_ushort v{VIN + 8 * n + 6}, v{T + 2 * n + 1}, s[{P_LDT}:{P_LDT + 1}]")
        vm_in = a.vm(f"global_load_ushort v{VIN + 8 * n + 7}, v{T + 2 * n + 1}, s[{P_DSK}:{P_DSK + 1}]")
    srd(a, R_WS, P_WS, None, WS_USED)
    srd(a, R_OUT, P_DBG, None, 256)
    mark = flag_reset(a, S_CW, T + 4)
    a.i(f"s_mul_i32 s3, s{S_CW}, 18")
    srd(a, R_X, P_U, 3, 0)
    a.i(f"s_sub_u32 s{R_X + 2}, {2048 * 1152}, s3")
    a.i(f"s_lshl_b32 s3, s{S_CW}, 3")
    a.i(f"s_add_u32 s3, s3, s{S_W}")
    a.i(f"s_lshl_b32 s{S_C7}, s3, 5")
    a.i(f"s_add_u32 s{S_C7}, s{S_C7}, {WS_G}")
    a.i(f"s_mul_i32 s3, s3, {4 * 1152}")
    srd(a, R_W1, P_U, 3, 4 * 1152)
    srd(a, R_M, P_GW, None, 1152)
    a.i(f"s_lshr_b32 s3, s{S_XCD}, 1")
    a.i(f"s_mul_i32 s3, s3, {1152 * 1152}")
    srd(a, R_W2, P_W2, 3, 1152 * 1152)
    side = []
    vm_u = [0]
    for row in range(4):
        def f(row=row):
            a.vm(f"buffer_load_dwordx4 {vr(U + 6 * row, 4)}, v{VUO}, s[{R_X}:{R_X + 3}], 0 offen offset:{row * 1152}")
            vm_u[0] = a.vm(f"buffer_load_ushort v{U + 6 * row + 4}, v{VUO}, s[{R_X}:{R_X + 3}], 0 offen offset:{row * 1152 + 16}")
        side.append(f)

    def gate_loads():
        a.i(f"v_lshlrev_b32 v{T}, 3, v3")
        for i in range(9):
            a.vm(f"buffer_load_dwordx2 {vr(GX + 2 * i, 2)}, v{VGO}, s[{R_W1}:{R_W1 + 3}], 0 offen offset:{128 * i}")
            vm_u[0] = a.vm(f"buffer_load_dwordx2 {vr(GW + 2 * i, 2)}, v{T}, s[{R_M}:{R_M + 3}], 0 offen offset:{128 * i}")
    side.append(gate_loads)
    if cfg.get("pf", True):
        def touch(blk):
            if blk == 0:
                a.i(f"v_min_u32 v{VPF}, {3456 - 1}, v{VPF}")
                a.i(f"v_mul_u32_u24 v{T}, 87382, v{VPF}")
                a.i(f"v_lshrrev_b32 v{T}, 18, v{T}")
                a.i(f"v_mul_u32_u24 v{T}, {1152 - 384}, v{T}")
                a.i(f"v_lshl_add_u32 v{VPF}, v{VPF}, 7, v{T}")
            a.vm(f"buffer_load_dword v2, v{VPF}, s[{R_W2}:{R_W2 + 3}], 0 offen offset:{384 * blk}")
        side += [lambda b=b: touch(b) for b in range(3)]
    a.i(f"s_mov_b32 s{S_C2}, 0x3fb8aa3b")
    a.i(f"s_mov_b32 s{S_C3}, 0x3e22f983")
    a.i(f"s_mov_b32 s{S_C4}, 0x01000100")
    a.i(f"s_mov_b32 s{S_C5}, 0x05040302")
    a.i(f"s_mov_b32 s{S_C6}, 0x03020302")
    side.pop(0)()
    a.wait(vm=vm_in)
    stamp(1)
    a.c("per-mode parameters (two modes per lane) of the own and of the shared channel")
    for n in range(2):
        I = VIN + 8 * n
        a.i(f"v_lshlrev_b32 v{T}, 16, v{I + 6}")
        a.i(f"v_mul_f32 v{T}, s{S_C2}, v{T}")
        a.i(f"v_exp_f32 v{T}, v{T}")
        a.i("s_nop 0")
        a.i(f"v_cvt_pk_bf16_f32 v{T}, v{T}, v{T}")
        a.i(f"v_and_b32 v{T}, 0xffff0000, v{T}")
        for m in range(2):
            un = (lambda d, s: a.i(f"v_lshlrev_b32 v{d}, 16, v{s}")) if m == 0 else (lambda d, s: a.i(f"v_and_b32 v{d}, 0xffff0000, v{s}"))
            o = T + 8 + 4 * m
            for k in range(6):
                un(T + 1 + k, I + k)
            for k in range(1, 5):
                a.i(f"v_mul_f32 v{T + k}, v{T}, v{T + k}")
            a.i(f"v_mul_f32 v{o}, s{S_C2}, v{T + 1}")
            a.i(f"v_mul_f32 v{o + 1}, s{S_C3}, v{T + 2}")
            a.i(f"v_mul_f32 v{o + 2}, v{T + 5}, v{T + 3}")
            a.i(f"v_mul_f32 v{o + 3}, v{T + 5}, v{T + 4}")
            a.i(f"v_rndne_f32 v{T + 1}, v{o + 1}")
            a.i(f"v_fma_f32 v{o + 2}, -v{T + 6}, v{T + 4}, v{o + 2}")
            a.i(f"v_fmac_f32 v{o + 3}, v{T + 6}, v{T + 3}")
            a.i(f"v_sub_f32 v{o + 1}, v{o + 1}, v{T + 1}")
            a.lds(f"ds_write_b128 v{VPW}, {vr(o, 4)} offset:{2048 * n + 16 * m}")
    flag_count(a, T, mark)
    a.wait_all_lds()
    for i in range(4):
        a.lds(f"ds_read_b128 {vr(VP + 4 * i, 4)}, v{VPR} offset:{16 * i}")
    X, Yy, E_, C_ = T, T + 4, T + 8, T + 12
    for ks in range(9):
        P = VP + 16 * (ks % 2)
        Pn = VP + 16 * (1 - ks % 2)
        D = VD if ks < 8 else VD9
        cin = lambda d: "0" if ks in (0, 8) else vr(d, 4)
        a.wait_all_lds()
        for i in range(4):
            if ks < 7:
                a.lds(f"ds_read_b128 {vr(Pn + 4 * i, 4)}, v{VPR} offset:{256 * (ks + 1) + 16 * i}")
            elif ks == 7:
                a.lds(f"ds_read_b128 {vr(Pn + 4 * i, 4)}, v{VPS} offset:{16 * i}")
        if side:
            side.pop(0)()
        for tile in range(4):
            tau = VTF if tile == 0 else VTG + tile - 1
            each = lambda fmt: [a.i(fmt(i)) for i in range(4)]
            each(lambda i: f"v_mul_f32 v{X + i}, v{P + 4 * i}, v{tau}")
            each(lambda i: f"v_mul_f32 v{Yy + i}, v{P + 4 * i + 1}, v{tau}")
            each(lambda i: f"v_exp_f32 v{X + i}, v{X + i}")
            if tile >= 2:
                each(lambda i: f"v_fract_f32 v{Yy + i}, v{Yy + i}")
            each(lambda i: f"v_cos_f32 v{C_ + i}, v{Yy + i}")
            each(lambda i: f"v_sin_f32 v{Yy + i}, v{Yy + i}")
            each(lambda i: f"v_mul_f32 v{C_ + i}, v{X + i}, v{C_ + i}")
            each(lambda i: f"v_mul_f32 v{Yy + i}, v{X + i}, v{Yy + i}")
            if tile == 0:
                each(lambda i: f"v_mul_f32 v{X + i}, v{C_ + i}, v{P + 4 * i + 2}")
                each(lambda i: f"v_mul_f32 v{E_ + i}, v{C_ + i}, v{P + 4 * i + 3}")
                each(lambda i: f"v_fma_f32 v{X + i}, -v{Yy + i}, v{P + 4 * i + 3}, v{X + i}")
                each(lambda i: f"v_fma_f32 v{E_ + i}, -v{Yy + i}, v{P + 4 * i + 2}, -v{E_ + i}")
                each(lambda i: f"v_cvt_pk_bf16_f32 v{VE + i}, v{X + i}, v{E_ + i}")
            else:
                h = VH + 4 * (tile - 1)
                each(lambda i: f"v_cvt_pk_bf16_f32 v{h + i}, v{C_ + i}, v{Yy + i}")
                if tile >= 2:
                    d, hp = D + 4 * (tile - 2), VH + 4 * (tile - 2)
                    a.i(f"v_mfma_f32_16x16x32_bf16 {vr(d, 4)}, {vr(hp, 4)}, {vr(VE, 4)}, {cin(d)}")
        a.i("s_nop 1")
        last = a.i(f"v_mfma_f32_16x16x32_bf16 {vr(D + 8, 4)}, {vr(VH + 8, 4)}, {vr(VE, 4)}, {cin(D + 8)}")
    assert not side
    stamp(2)

    def expand(D, dsk, kw):
        a.c("skip connection folded into lag 0; distinct values -> table")
        a.i(f"v_cmp_eq_u32 vcc, 0, v0")
        a.i(f"v_lshlrev_b32 v{T}, 16, v{dsk}")
        a.i("s_nop 0")
        a.i(f"v_cndmask_b32 v{T}, 0, v{T}, vcc")
        a.i(f"v_add_f32 v{D}, v{D}, v{T}")
        for i in range(6):
            a.i(f"v_cvt_pk_bf16_f32 v{T + i}, v{D + 2 * i}, v{D + 2 * i + 1}")
        a.lds(f"ds_write_b64 v{VT0}, {vr(T, 2)}")
        a.lds(f"ds_write_b32 v{VT1A}, v{T + 2}")
        a.lds(f"ds_write_b32 v{VT1B}, v{T + 3}")
        a.lds(f"ds_write_b16 v{VT2}, v{T + 4}")
        a.lds(f"ds_write_b16_d16_hi v{VT2}, v{T + 4} offset:32")
        a.lds(f"ds_write_b16 v{VT2}, v{T + 5} offset:64")
        a.lds(f"ds_write_b16_d16_hi v{VT2}, v{T + 5} offset:96")
        a.wait_all_lds()
        a.c("expand to the 2048 lags (bf16(l) is piecewise constant), two copies one element apart")
        S0, S1, S2, S3, S4 = VP, VP + 6, VP + 12, VP + 14, VP + 16
        a.lds(f"ds_read2_b64 {vr(S0, 4)}, v{VE0} offset0:0 offset1:1")
        a.lds(f"ds_read_u16 v{S0 + 4}, v{VE0P}")
        a.lds(f"ds_read2_b64 {vr(S1, 4)}, v{VE1} offset0:0 offset1:1")
        a.lds(f"ds_read_u16 v{S1 + 4}, v{VE1P}")
        a.lds(f"ds_read2_b32 {vr(S2, 2)}, v{VE2} offset0:0 offset1:1")
        a.lds(f"ds_read_u16 v{S3}, v{VE3}")
        a.lds(f"ds_read_u16 v{S3 + 1}, v{VE3} offset:2")
        a.lds(f"ds_read_u16 v{S4}, v{VE3} offset:128")
        a.lds(f"ds_read_u16 v{S4 + 1}, v{VE3} offset:130")
        O0, O1, Z = T, T + 4, T + 8
        for i in range(4):
            a.i(f"v_mov_b32 v{Z + i}, 0")
        a.wait_all_lds()

        def shifted(c0, prev_hi):
            a.i(f"v_alignbit_b32 v{O1}, v{c0}, v{prev_hi}, 16")
            for k in range(1, 4):
                a.i(f"v_alignbit_b32 v{O1 + k}, v{c0 + k}, v{c0 + k - 1}, 16")

        def put(c0, piece0):
            a.lds(f"ds_write_b128 v{kw}, {vr(c0, 4)} offset:{32 + 16 * piece0}")
            a.lds(f"ds_write_b128 v{kw}, {vr(O1, 4)} offset:{K_COPY + 32 + 16 * piece0}")

        a.i("s_mov_b64 exec, 3")
        a.lds(f"ds_write_b128 v{kw}, {vr(Z, 4)}")
        a.lds(f"ds_write_b128 v{kw}, {vr(Z, 4)} offset:{K_COPY}")
        a.i("s_mov_b32 exec_lo, -1")
        a.i(f"v_lshlrev_b32 v{S0 + 4}, 16, v{S0 + 4}")
        a.i(f"v_lshlrev_b32 v{S1 + 4}, 16, v{S1 + 4}")
        a.i(f"v_cndmask_b32 v{S0 + 4}, v{S0 + 4}, 0, vcc")
        shifted(S0, S0 + 4)
        put(S0, 0)
        a.i(f"v_perm_b32 v{O0}, v{S1}, v{S1}, s{S_C4}")
        a.i(f"v_perm_b32 v{O0 + 1}, v{S1 + 1}, v{S1}, s{S_C5}")
        a.i(f"v_perm_b32 v{O0 + 2}, v{S1 + 1}, v{S1 + 1}, s{S_C4}")
        a.i(f"v_perm_b32 v{O0 + 3}, v{S1 + 2}, v{S1 + 1}, s{S_C5}")
        shifted(O0, S1 + 4)
        put(O0, 32)
        a.i("s_mov_b64 exec, -1")
        a.i(f"v_perm_b32 v{O0}, v{S2}, v{S2}, s{S_C4}")
        a.i(f"v_mov_b32 v{O0 + 1}, v{S2}")
        a.i(f"v_perm_b32 v{O0 + 2}, v{S2}, v{S2}, s{S_C6}")
        a.i(f"v_perm_b32 v{O0 + 3}, v{S2 + 1}, v{S2 + 1}, s{S_C4}")
        shifted(O0, O0)
        put(O0, 64)
        for s, piece in ((S3, 128), (S4, 192)):
            a.i(f"v_perm_b32 v{O0}, v{s}, v{s}, s{S_C4}")
            a.i(f"v_perm_b32 v{O0 + 1}, v{s}, v{s}, s{S_C4}")
            a.i(f"v_perm_b32 v{O0 + 2}, v{s + 1}, v{s}, v{VSEL}")
            a.i(f"v_perm_b32 v{O0 + 3}, v{s + 1}, v{s + 1}, s{S_C4}")
            shifted(O0, O0)
            put(O0, piece)

    expand(VD, VIN + 7, VKW)
    a.c("this wave's share of the shared channel")
    a.i(f"s_mul_i32 s3, s{S_W}, 3072")
    a.i(f"s_add_u32 s3, s3, {L_D9}")
    a.i(f"v_lshl_add_u32 v{T + 12}, v0, 4, s3")
    for i in range(3):
        a.lds(f"ds_write_b128 v{T + 12}, {vr(VD9 + 4 * i, 4)} offset:{1024 * i}")
    a.c("transpose 4 rows x 9 channels, newest sample first")
    a.i(f"s_mov_b32 s{S_C2}, 0x05040100")
    a.i(f"s_mov_b32 s{S_C3}, 0x07060302")
    a.wait(vm=vm_u[0])
    for ch in range(9):
        o = VP + 2 * ch
        for k in range(2):
            lo, hi = U + 6 * (3 - 2 * k) + ch // 2, U + 6 * (2 - 2 * k) + ch // 2
            a.i(f"v_perm_b32 v{o + k}, v{hi}, v{lo}, s{S_C3 if ch % 2 else S_C2}")
        a.lds(f"ds_write_b64 v{VUW}, {vr(o, 2)} offset:{L_UT + ch * UT_CH + 512}")
    a.c("gate of 4 rows: 16 lanes per row, products rounded to bf16 like the reference")
    acc = T + 8
    for k in range(18):
        x, w = GX + k, GW + k
        a.i(f"v_lshlrev_b32 v{T}, 16, v{x}")
        a.i(f"v_lshlrev_b32 v{T + 1}, 16, v{w}")
        a.i(f"v_and_b32 v{T + 2}, 0xffff0000, v{x}")
        a.i(f"v_and_b32 v{T + 3}, 0xffff0000, v{w}")
        a.i(f"v_mul_f32 v{T}, v{T}, v{T + 1}")
        a.i(f"v_mul_f32 v{T + 2}, v{T + 2}, v{T + 3}")
        a.i(f"v_cvt_pk_bf16_f32 v{T}, v{T}, v{T + 2}")
        if k == 0:
            a.i(f"v_lshlrev_b32 v{acc}, 16, v{T}")
            a.i(f"v_and_b32 v{acc + 1}, 0xffff0000, v{T}")
        else:
            a.i(f"v_lshlrev_b32 v{T + 1}, 16, v{T}")
            a.i(f"v_and_b32 v{T}, 0xffff0000, v{T}")
            a.i(f"v_add_f32 v{acc}, v{acc}, v{T + 1}")
            a.i(f"v_add_f32 v{acc + 1}, v{acc + 1}, v{T}")
    a.i(f"v_add_f32 v{acc}, v{acc}, v{acc + 1}")
    for ctl in ("quad_perm:[1,0,3,2]", "quad_perm:[2,3,0,1]", "row_half_mirror", "row_mirror"):
        a.i("s_nop 1")
        a.i(f"v_add_f32_dpp v{acc}, v{acc}, v{acc} {ctl} row_mask:0xf bank_mask:0xf")
    a.i(f"v_cvt_pk_bf16_f32 v{acc}, v{acc}, v{acc}")
    a.i(f"v_and_b32 v{acc}, 0xffff0000, v{acc}")
    a.i(f"v_mul_f32 v{acc}, 0xbfb8aa3b, v{acc}")
    a.i(f"v_exp_f32 v{acc}, v{acc}")
    a.i(f"v_lshlrev_b32 v{T + 2}, 3, v4")
    a.i(f"v_add_f32 v{acc}, 1.0, v{acc}")
    a.i(f"v_rcp_f32 v{acc}, v{acc}")
    a.i("s_nop 0")
    a.i(f"v_cvt_pk_bf16_f32 v{T}, v{acc}, v{acc}")
    a.i(f"v_and_b32 v{T}, 0xffff0000, v{T}")
    a.i(f"v_sub_f32 v{T + 1}, 1.0, v{T}")
    a.i(f"v_cvt_pk_bf16_f32 v{T + 1}, v{T + 1}, v{T + 1}")
    a.i(f"v_and_b32 v{T + 1}, 0xffff0000, v{T + 1}")
    a.i("s_mov_b32 exec_lo, 0x00010001")
    a.i("s_mov_b32 exec_hi, 0x00010001")
    a.vm(f"buffer_store_dwordx2 {vr(T, 2)}, v{T + 2}, s[{R_WS}:{R_WS + 3}], s{S_C7} offen{SC1}")
    a.i("s_mov_b64 exec, -1")
    a.wait_all_lds()
    stamp(3)
    a.i("s_barrier")
    a.c("wave 7 finishes the kernel of the shared channel (its table sits in that channel's own buffer)")
    a.i(f"s_cmp_lg_u32 s{S_W}, 7")
    a.i("s_cbranch_scc1 L_conv_own")
    a.i(f"v_add_u32 v{T + 12}, {-7 * 3072}, v{T + 12}")
    got = {}
    for w in range(7):
        for i in range(3):
            got[w] = a.lds(f"ds_read_b128 {vr(160 + 12 * w + 4 * i, 4)}, v{T + 12} offset:{3072 * w + 1024 * i}")
    for v in (VT0, VT1A, VT1B, VT2, VE0, VE0P, VE1, VE1P, VE2, VE3, VKW):
        a.i(f"v_add_u32 v{v}, {K_BUF}, v{v}")
    for w in range(7):
        a.wait(lds=got[w])
        for i in range(12):
            a.i(f"v_add_f32 v{VD9 + i}, v{VD9 + i}, v{160 + 12 * w + i}")
    expand(VD9, VIN + 15, VKW)
    a.wait_all_lds()
    a.label("L_conv_own")

    def conv(bs):
        ld = {}

        def loads(b):
            s = b % 2
            ops = []
            for x in range(8):
                def fa(x=x, h=0):
                    o = ((x % 2) * 512 + 64 * b) // 4 + 2 * h
                    ld[("A", b, x)] = a.lds(f"ds_read2_b32 {vr(A[s] + 4 * x + 2 * h, 2)}, v{VA0 + x // 2} offset0:{o} offset1:{o + 1}")

                def fb(x=x):
                    ld[("B", b, x)] = a.lds(f"ds_read_b128 {vr(B[s] + 4 * x, 4)}, v{VB0} offset:{512 * x - 64 * b + 480}")
                ops += [fa, (lambda x=x, fa=fa: fa(x, 1)), fb]
            return ops
        q = loads(0)
        for _ in range(12):
            q.pop(0)()
        for b in range(bs):
            s = b % 2
            q += loads(b + 1) if b + 1 < bs else []
            for J in range(8):
                for x in range(J + 1):
                    a.wait(lds=max(ld[("A", b, x)], ld[("B", b, J - x)]))
                    cin = "0" if (b == 0 and x == 0) else vr(Y + 4 * J, 4)
                    last = a.i(f"v_mfma_f32_16x16x32_bf16 {vr(Y + 4 * J, 4)}, {vr(A[s] + 4 * x, 4)}, {vr(B[s] + 4 * (J - x), 4)}, {cin}")
                    if q:
                        q.pop(0)()
            assert not q
        return last

    last = conv(8)
    a.c("bases for this wave's eighth (lags 32w.. of every 256) of the shared channel")
    a.i(f"s_mul_i32 s3, s{S_W}, {(64 - K_BUF) & 0xffffffff}")
    a.i(f"s_add_u32 s3, s3, {8 * K_BUF}")
    for k in range(4):
        a.i(f"v_add_u32 v{VA0 + k}, s3, v{VA0 + k}")
    a.i(f"s_mul_i32 s3, s{S_W}, {(-64 - UT_CH) & 0xffffffff}")
    a.i(f"s_add_u32 s3, s3, {8 * UT_CH}")
    a.i(f"v_add_u32 v{VB0}, s3, v{VB0}")
    a.dist(last, 8)
    O = VIN
    for J in range(8):
        a.i(f"v_cvt_pk_bf16_f32 v{O + 2 * J}, v{Y + 4 * J}, v{Y + 4 * J + 1}")
        a.i(f"v_cvt_pk_bf16_f32 v{O + 2 * J + 1}, v{Y + 4 * J + 2}, v{Y + 4 * J + 3}")
        a.vm(f"buffer_store_dwordx2 {vr(O + 2 * J, 2)}, v{VO}, s[{R_WS}:{R_WS + 3}], s{S_C8} offen offset:{512 * J}{SC1}")
    stamp(4)
    a.i("s_barrier")
    last = conv(1)
    a.c("partial outputs go through the (now dead) kernel buffers")
    a.i(f"v_lshl_add_u32 v5, v0, 4, s{S_KB}")
    a.i(f"s_lshl_b32 s3, s{S_W}, 10")
    a.i(f"s_add_u32 s3, s3, {L_K}")
    a.i(f"v_lshl_add_u32 v6, v0, 4, s3")
    a.i(f"s_add_u32 s3, s{S_CH}, 8")
    a.i(f"s_lshl_b32 s3, s3, 12")
    a.i(f"s_lshl_b32 s{S_C8}, s{S_W}, 9")
    a.i(f"s_add_u32 s{S_C8}, s{S_C8}, s3")
    a.i(f"s_add_u32 s{S_C8}, s{S_C8}, {WS_AT}")
    a.dist(last, 8)
    for J in range(8):
        a.lds(f"ds_write_b128 v5, {vr(Y + 4 * J, 4)} offset:{1024 * J}")
    a.wait_all_lds()
    a.i("s_barrier")
    got = {}
    for w in range(8):
        got[w] = a.lds(f"ds_read_b128 {vr(8 + 4 * w, 4) if w == 0 else vr(64 + 4 * w, 4)}, v6 offset:{K_BUF * w}")
    for w in range(1, 8):
        a.wait(lds=got[w])
        for i in range(4):
            a.i(f"v_add_f32 v{8 + i}, v{8 + i}, v{64 + 4 * w + i}")
    a.i("v_cvt_pk_bf16_f32 v8, v8, v9")
    a.i("v_cvt_pk_bf16_f32 v9, v10, v11")
    a.vm(f"buffer_store_dwordx2 v[8:9], v{VO}, s[{R_WS}:{R_WS + 3}], s{S_C8} offen{SC1}")
    stamp(5)
    a.wait_all_vm()
    a.i("s_barrier")
    a.i(f"s_cmp_lg_u32 s{S_W}, 0")
    a.i("s_cbranch_scc1 L_conv_done")
    flag_set(a, 2)
    a.label("L_conv_done")
    if stamps:
        stamp(6)
        a.i("s_mov_b64 exec, -1")
        a.wait_all_vm()
        emit_stamps(a, 7)
    a.i("s_endpgm")
    a.label("L_conv_end")
```

```python
from asmlib import *
from layout import *
import layout

V_W1O = 1
V_W2O = 3
V_LW1 = 5
V_LW2 = 8
V_AW = 11
V_AR = 14
V_BIAS = 17
V_FA = 18
V_FE = 19
V_L16 = 20
V_DUMMY = 21
V_BT = 22
V_L8 = 23
V_T = 24
V_PK = 32
V_WF = 40
V_H = 56
V_S = 104
V_X = 112
V_RD = 208
V_B = 232
V_A = 244
V_P2 = V_T + 7
V_G = V_S
V_AO = V_S + 2
V_OO = V_S + 3

UNIT = 16384
NK1 = 216
NK = 432
ORDER2 = [(0, 0), (0, 1), (1, 0), (1, 1), (2, 0), (2, 1), (0, 2), (1, 2), (2, 2)] + [(t, u) for t in range(3, 9) for u in range(3)]


def pbuf(t):
    return V_RD if t == 2 else V_H + 16 * (t if t < 2 else (t - 1) % 3)


def wbuf(i):
    return V_WF + 4 * i if i < 4 else V_S + 4


def seg(unit):
    return unit // 4, (unit % 4) * UNIT


class Item:
    def __init__(self, kind, idx, need_stage):
        self.kind, self.idx, self.need = kind, idx, need_stage
        self.unit = None
        self.vm = None
        self.visible = False
        self.last_read = None
        self.freed = False


def mish_groups():
    t = lambda e: V_T + e % 4
    u = lambda e: V_T + 4 + e % 4
    h = lambda e: V_H + 16 * ((e // 16) % 3) + e % 16
    ok = lambda e: 0 <= e < 96
    groups = []
    for e in range(0, 99):
        g, fin = [], None
        if ok(e - 2):
            g.append(f"v_rcp_f32 v{u(e - 2)}, v{u(e - 2)}")
        if ok(e):
            g.append(f"v_mul_f32 v{t(e)}, s{S_LOG2E}, v{h(e)}")
        if ok(e - 1):
            g.append(f"v_fma_f32 v{u(e - 1)}, v{t(e - 1)}, -0.5, -1.0")
        if ok(e - 3) and (e - 3) % 2 == 1:
            g.append(f"v_cvt_pk_bf16_f32 v{V_PK + ((e - 3) % 16) // 2}, v{h(e - 4)}, v{h(e - 3)}")
            if (e - 3) % 8 == 7:
                fin = ((e - 3) // 16, ((e - 3) % 16) // 8)
        groups.append((e // 16 if ok(e) and e % 16 == 0 else None, g, fin))
        g = []
        if ok(e):
            g.append(f"v_exp_f32 v{t(e)}, v{t(e)}")
        if ok(e - 1):
            g.append(f"v_fma_f32 v{u(e - 1)}, v{t(e - 1)}, v{u(e - 1)}, -1.0")
        if ok(e - 2):
            g.append(f"v_fmac_f32 v{h(e - 2)}, v{h(e - 2)}, v{u(e - 2)}")
        if g:
            groups.append((None, g, None))
    return groups


def srd(a, r, p, off, size):
    if off is None:
        a.i(f"s_mov_b32 s{r}, s{p}")
        a.i(f"s_mov_b32 s{r + 1}, s{p + 1}")
    else:
        a.i(f"s_add_u32 s{r}, s{p}, s{off}")
        a.i(f"s_addc_u32 s{r + 1}, s{p + 1}, 0")
    a.i(f"s_mov_b32 s{r + 2}, {size}")
    a.i(f"s_mov_b32 s{r + 3}, 0x20000")


def gen_mlp(a, cfg):
    PF = cfg.get("PF", 3)
    NB = PF + 1
    TIGHT = cfg.get("tight", 32)
    PRE = cfg.get("pre", 6)
    stamps = cfg.get("stamps", False)
    tail = cfg.get("tail", True)
    SC1 = " sc1"
    STK = {int(k): v for k, v in cfg.get("stampk", {"40": 3, "112": 4, "216": 5}).items()}
    ool = []

    def stamp(k):
        if stamps:
            layout.stamp(a, k)

    a.label("L_mlp")
    if cfg.get("codepf", True):
        a.c("pull this role's code into L2")
        a.i(f"s_getpc_b64 s[{S_PC}:{S_PC + 1}]")
        a.label("L_mlp_pc")
        a.i(f"v_lshlrev_b32 v{V_DUMMY}, 7, v0")
        a.i(f"v_min_u32 v{V_DUMMY}, L_mlp_end-L_mlp_pc-4, v{V_DUMMY}")
        a.vm(f"global_load_dword v{V_DUMMY}, v{V_DUMMY}, s[{S_PC}:{S_PC + 1}]")
    a.c("mtile = 8*(x&1) + (j&7), slice = 3*(x>>1) + (j>>3)")
    a.i(f"s_and_b32 s{S_MT}, s{S_XCD}, 1")
    a.i(f"s_lshl_b32 s{S_MT}, s{S_MT}, 3")
    a.i(f"s_and_b32 s3, s{S_J}, 7")
    a.i(f"s_add_u32 s{S_MT}, s{S_MT}, s3")
    a.i(f"s_lshr_b32 s{S_SL}, s{S_XCD}, 1")
    a.i(f"s_mul_i32 s{S_SL}, s{S_SL}, 3")
    a.i(f"s_lshr_b32 s3, s{S_J}, 3")
    a.i(f"s_add_u32 s{S_SL}, s{S_SL}, s3")
    a.i(f"s_and_b32 s{S_MQ}, s{S_W}, 3")
    a.i(f"s_lshr_b32 s{S_P}, s{S_W}, 2")
    a.i(f"s_lshl_b32 s{S_WL}, s{S_W}, 11")
    rot = cfg.get("rot", True)
    a.c("workgroups that share operands walk them in different orders, so that their first touches are spread out:")
    a.c("hidden columns start at block (mtile&7) mod 6, the contraction starts at piece 3*(slice mod 3)")

    def table(dst, n, first, mod, scale):
        for i in range(n):
            d = dst[i] if isinstance(dst, tuple) else dst + i
            a.i(f"s_mul_i32 s{d}, s3, {scale}")
            if i + 1 < n:
                a.i(f"s_add_u32 s3, s3, {first}")
                a.i(f"s_cmp_ge_u32 s3, {mod}")
                a.i(f"s_cselect_b32 s{S_OFF}, {mod}, 0")
                a.i(f"s_sub_u32 s3, s3, s{S_OFF}")
    a.i(f"s_lshr_b32 s{S_SO}, s{S_J}, 3")
    a.i(f"s_mul_i32 s{S_SO}, s{S_SO}, {3 if rot else 0}")
    a.i(f"s_add_u32 s3, s{S_SO}, s{S_P}")
    table(S_TK, 9, 1, 9, 64 * 9216)
    a.i(f"s_lshl_b32 s{S_SO}, s{S_SO}, 7")
    a.i(f"s_and_b32 s{S_PB}, s{S_J}, {7 if rot else 0}")
    a.i(f"s_cmp_ge_u32 s{S_PB}, 6")
    a.i(f"s_cselect_b32 s3, 6, 0")
    a.i(f"s_sub_u32 s{S_PB}, s{S_PB}, s3")
    a.i(f"s_mov_b32 s3, s{S_PB}")
    table(S_TR, 6, 1, 6, 128)
    a.i(f"s_cmp_eq_u32 s{S_P}, 0")
    for i in range(3):
        a.i(f"s_cselect_b32 s{S_TP + i}, s{S_TR + 2 * i}, s{S_TR + 2 * i + 1}")
    a.i(f"s_add_u32 s3, s{S_PB}, s{S_P}")
    a.i(f"s_cmp_ge_u32 s3, 6")
    a.i(f"s_cselect_b32 s{S_OFF}, 6, 0")
    a.i(f"s_sub_u32 s3, s3, s{S_OFF}")
    table(S_T2, 3, 2, 6, 64 * 1152)
    a.i(f"s_mov_b32 s{S_LOG2E}, 0x3fb8aa3b")
    T = V_T
    S = V_H + 32
    XO = V_PK + 6
    XA = V_T
    BIAS_UNIT = 9
    a.c("DMA lane offsets")
    a.i("v_and_b32 v0, 63, v0")
    a.i(f"v_lshlrev_b32 v{V_L16}, 4, v0")
    a.i(f"v_lshrrev_b32 v{S}, 3, v0")
    a.i(f"s_lshl_b32 s3, s{S_W}, 4")
    a.i(f"v_add_u32 v{S}, s3, v{S}")
    a.i(f"v_and_b32 v{S + 1}, 7, v0")
    a.i(f"v_lshrrev_b32 v{S + 2}, 4, v0")
    a.i(f"v_xor_b32 v{S + 3}, v{S + 1}, v{S + 2}")
    a.i(f"v_mul_u32_u24 v{S + 4}, 1152, v{S}")
    a.i(f"v_lshl_add_u32 v{XO}, v{S + 3}, 4, v{S + 4}")
    a.i(f"v_xor_b32 v{S + 3}, 4, v{S + 3}")
    a.i(f"v_lshl_add_u32 v{XO + 1}, v{S + 3}, 4, v{S + 4}")
    a.i(f"v_add_u32 v{XO + 1}, {8 * 1152 - 1024}, v{XO + 1}")
    a.i(f"v_and_b32 v{S + 2}, 1, v{S + 2}")
    a.i(f"v_lshlrev_b32 v{S + 2}, 2, v{S + 2}")
    a.i(f"v_xor_b32 v{S + 3}, v{S + 1}, v{S + 2}")
    a.i(f"v_and_b32 v{S}, 63, v{S}")
    a.i(f"v_mul_u32_u24 v{S + 4}, 1152, v{S}")
    a.i(f"v_lshl_add_u32 v{V_W2O}, v{S + 3}, 4, v{S + 4}")
    a.i(f"v_add_u32 v{V_W2O + 1}, {8 * 1152 - 1024}, v{V_W2O}")
    a.i(f"v_mul_u32_u24 v{S + 4}, 9216, v{S}")
    a.i(f"v_lshl_add_u32 v{V_W1O}, v{S + 3}, 4, v{S + 4}")
    a.i(f"v_add_u32 v{V_W1O + 1}, {8 * 9216 - 1024}, v{V_W1O}")
    a.i(f"s_add_u32 s3, s{S_W}, s{S_PB}")
    a.i(f"s_cmp_ge_u32 s3, 6")
    a.i(f"s_cselect_b32 s{S_OFF}, 6, 0")
    a.i(f"s_sub_u32 s3, s3, s{S_OFF}")
    a.i(f"s_lshl_b32 s3, s3, 7")
    a.i(f"v_lshl_add_u32 v{V_BT}, v0, 1, s3")
    a.c("transpose-read bases: i'=(l&15)>>2, c'=l&3, fb=(l>>4)&1, h=l>>5")
    a.i(f"v_bfe_u32 v{S}, v0, 2, 2")
    a.i(f"v_lshrrev_b32 v{S + 1}, 5, v0")
    a.i(f"v_lshrrev_b32 v{S + 2}, 1, v{S}")
    a.i(f"v_xor_b32 v{S + 2}, s{S_P}, v{S + 2}")
    a.i(f"v_lshlrev_b32 v{S + 2}, 6, v{S + 2}")
    a.i(f"v_bfe_u32 v{S + 3}, v0, 4, 1")
    a.i(f"v_lshl_add_u32 v{S + 2}, v{S + 3}, 5, v{S + 2}")
    a.i(f"v_and_b32 v{S + 3}, 3, v0")
    a.i(f"v_lshl_add_u32 v{S + 2}, v{S + 3}, 3, v{S + 2}")
    a.i(f"v_lshl_add_u32 v{S + 2}, v{S}, 7, v{S + 2}")
    a.i(f"v_lshl_add_u32 v{V_LW1}, v{S + 1}, 10, v{S + 2}")
    a.i(f"v_lshl_add_u32 v{V_LW2}, v{S + 1}, 9, v{S + 2}")
    a.i(f"v_add_u32 v{V_AW}, s{S_WL}, v{V_L16}")
    a.i(f"s_lshl_b32 s3, s{S_MQ}, 11")
    a.i(f"v_add_u32 v{V_AR}, s3, v{V_L16}")
    for base in (V_LW1, V_LW2, V_AW, V_AR):
        a.i(f"v_add_u32 v{base + 1}, 0x10000, v{base}")
        a.i(f"v_add_u32 v{base + 2}, 0x20000, v{base}")
    a.i(f"s_lshl_b32 s3, s{S_P}, 7")
    a.i(f"s_add_u32 s3, s3, {BIAS_UNIT * UNIT}")
    a.i(f"v_lshl_add_u32 v{V_BIAS}, v{S + 1}, 4, s3")
    a.c("x fragment read addresses")
    a.i(f"v_and_b32 v{S}, 31, v0")
    a.i(f"s_lshl_b32 s3, s{S_MQ}, 5")
    a.i(f"v_add_u32 v{S}, s3, v{S}")
    a.i(f"v_bfe_u32 v{S + 2}, v{S}, 1, 3")
    a.i(f"v_xor_b32 v{S + 1}, v{S + 2}, v{S + 1}")
    a.i(f"v_lshlrev_b32 v{S}, 7, v{S}")
    for k in range(4):
        a.i(f"v_xor_b32 v{S + 3}, {2 * k}, v{S + 1}")
        a.i(f"v_lshl_add_u32 v{XA + 3 * k}, v{S + 3}, 4, v{S}")
        a.i(f"v_add_u32 v{XA + 3 * k + 1}, 0x10000, v{XA + 3 * k}")
        a.i(f"v_add_u32 v{XA + 3 * k + 2}, 0x20000, v{XA + 3 * k}")
    a.i(f"s_lshl_b32 s3, s{S_W}, 8")
    a.i(f"s_add_u32 s3, s3, {BIAS_UNIT * UNIT}")
    a.i(f"v_lshl_add_u32 v{S + 4}, v0, 2, s3")
    a.c("partial base = (((mtile*12 + slice)*8 + w)*9)*2048")
    a.i(f"s_mul_i32 s{S_PB}, s{S_MT}, 12")
    a.i(f"s_add_u32 s{S_PB}, s{S_PB}, s{S_SL}")
    a.i(f"s_lshl_b32 s{S_PB}, s{S_PB}, 3")
    a.i(f"s_add_u32 s{S_PB}, s{S_PB}, s{S_W}")
    a.i(f"s_mul_i32 s{S_PB}, s{S_PB}, {9 * 2048}")
    if tail:
        a.c("flag line of (mtile, w); this wave's word; lane offsets of the final stage")
        a.i(f"s_lshl_b32 s{S_FL}, s{S_MT}, 3")
        a.i(f"s_add_u32 s{S_FL}, s{S_FL}, s{S_W}")
        a.i(f"s_lshl_b32 s{S_FL}, s{S_FL}, 7")
        a.i(f"s_add_u32 s{S_FL}, s{S_FL}, {WS_FLAG}")
        a.i(f"s_lshl_b32 s3, s{S_SL}, 2")
        a.i(f"s_add_u32 s{S_FW}, s{S_FL}, s3")
        a.i(f"v_min_u32 v{V_FA}, 11, v0")
        a.i(f"v_lshlrev_b32 v{V_FA}, 2, v{V_FA}")
        a.i(f"v_lshrrev_b32 v{S + 5}, 5, v0")
        a.i(f"v_and_b32 v{S + 6}, 31, v0")
        a.i(f"v_mul_u32_u24 v{V_L8}, {8 * 9 * 2048}, v{S + 5}")
        a.i(f"v_lshl_add_u32 v{V_L8}, v{S + 6}, 4, v{V_L8}")
        a.i(f"v_lshlrev_b32 v{V_AO}, 14, v{S + 5}")
        a.i(f"v_lshl_add_u32 v{V_AO}, v{S + 6}, 1, v{V_AO}")
        a.i(f"v_mul_u32_u24 v{V_OO}, 1152, v{S + 6}")
        a.i(f"v_lshl_add_u32 v{V_OO}, v{S + 5}, 3, v{V_OO}")
        a.i(f"v_lshlrev_b32 v{V_G}, 3, v{S + 6}")
        a.c("reader base of the pieces: ((mtile*12*8 + w)*9 + (slice>>2))*2048 + (slice&3)*512")
        a.i(f"s_mul_i32 s{S_RB}, s{S_MT}, 96")
        a.i(f"s_add_u32 s{S_RB}, s{S_RB}, s{S_W}")
        a.i(f"s_mul_i32 s{S_RB}, s{S_RB}, {9 * 2048}")
        a.i(f"s_lshl_b32 s3, s{S_SL}, 9")
        a.i(f"s_add_u32 s{S_RB}, s{S_RB}, s3")
        a.c("first column of piece 0: 64*(slice>>2) + 32p + 8*(slice&3); first row 128*mtile + 32mq")
        a.i(f"s_lshr_b32 s{S_D0}, s{S_SL}, 2")
        a.i(f"s_lshl_b32 s{S_D0}, s{S_D0}, 6")
        a.i(f"s_and_b32 s3, s{S_SL}, 3")
        a.i(f"s_lshl_b32 s3, s3, 3")
        a.i(f"s_add_u32 s{S_D0}, s{S_D0}, s3")
        a.i(f"s_lshl_b32 s3, s{S_P}, 5")
        a.i(f"s_add_u32 s{S_D0}, s{S_D0}, s3")
        a.i(f"s_lshl_b32 s{S_T0}, s{S_MT}, 2")
        a.i(f"s_add_u32 s{S_T0}, s{S_T0}, s{S_MQ}")
        a.i(f"s_lshl_b32 s{S_T0}, s{S_T0}, 5")
    a.i(f"s_mul_i32 s{S_OFF}, s{S_MT}, {128 * 1152}")
    a.i(f"s_mul_i32 s3, s{S_SL}, 768")
    a.i("s_waitcnt lgkmcnt(0)")
    srd(a, R_X, P_U, S_OFF, 128 * 1152)
    srd(a, R_M, P_B1, 3, 768)
    srd(a, R_W1, P_W1, 3, 0)
    a.i(f"s_sub_u32 s{R_W1 + 2}, {576 * 9216}, s3")
    vm_bias = a.vm(f"buffer_load_ushort v{V_BT}, v{V_BT}, s[{R_M}:{R_M + 3}], 0 offen")
    srd(a, R_WS, P_WS, None, WS_USED)
    reset = dict(vm=None, safe=False, counted=False)

    bars = list(range(0, TIGHT + 1, 8))
    bars += [36 * r + o for r in range(6) for o in cfg.get("bars1", [3, 15, 27]) if 36 * r + o > TIGHT + 3]
    bars += cfg.get("bars15", [219, 231, 243, 254, 264])
    bars += list(range(cfg.get("b2", 276), NK, cfg.get("sp", 12)))
    bars = sorted(set(bars))

    items = []
    Wst = [Item("W", i, i) for i in range(NK // 8)]
    Xp = [Item("X", j, j // 2) for j in range(9)]
    Act = [Item("A", r, (36 * (r + 1) + 22) // 8 + cfg.get("actlate", 2)) for r in range(6)]
    for s in range(NK // 8):
        items += [x for x in Xp if x.need == s]
        items += [x for x in Act if x.need == s]
        items.append(Wst[s])
    bias_item = Item("B", 0, 0)
    bias_item.unit = BIAS_UNIT
    free = list(range(9))
    nxt = [0]
    dma_q = []

    def dma_ops(it):
        if it.kind == "X":
            vo, r, so = XO, R_X, f"s_mov_b32 s{S_OFF}, s{S_SO}"
        elif it.idx < 27:
            rnd, d0 = (128 * it.idx) // 576, (128 * it.idx) % 576
            vo, r = V_W1O, R_W1
            so = f"s_add_u32 s{S_OFF}, s{S_TK + d0 // 64}, s{S_TP + rnd // 2 if d0 + 128 > 576 else S_TR + rnd}"
        else:
            t, u = ORDER2[it.idx - 27]
            vo, r, so = V_W2O, R_W2, f"s_add_u32 s{S_OFF}, s{S_T2[u]}, {t * 128}"
        skip = cfg.get("nodma") and it.need >= 3

        def first():
            if not skip:
                a.i(f"s_add_u32 m0, s{S_WL}, {it.unit * UNIT}")
                a.i(so)
                a.vm(f"buffer_load_dwordx4 v{vo}, s[{r}:{r + 3}], s{S_OFF} offen lds")

        def second():
            it.vm = 0 if skip else a.vm(f"buffer_load_dwordx4 v{vo + 1}, s[{r}:{r + 3}], s{S_OFF} offen offset:1024 lds")
            if it.kind == "X" and it.idx < 8:
                a.i(f"s_add_u32 s{S_SO}, s{S_SO}, 128")
                a.i(f"s_cmp_eq_u32 s{S_SO}, 1152")
                a.i(f"s_cselect_b32 s{S_SO}, 0, s{S_SO}")
        return [first, second]

    def allocate(maxiss):
        n = 0
        while nxt[0] < len(items) and free:
            it = items[nxt[0]]
            if it.kind != "A" and n >= maxiss:
                break
            it.unit = free.pop(0)
            nxt[0] += 1
            if it.kind != "A":
                dma_q.extend(dma_ops(it))
                n += 1

    allocate(99)
    for _ in range(6):
        dma_q.pop(0)()
    a.i(f"s_mul_i32 s3, s{S_SL}, {384 * 1152}")
    srd(a, R_W2, P_W2, 3, 384 * 1152)
    if tail:
        srd(a, R_OUT, P_OUT, None, 2048 * 1152)
        srd(a, R_M, P_DBG, None, 256)
    for _ in range(2 * PRE - 6):
        dma_q.pop(0)()
    stamp(1)
    a.wait(vm=vm_bias)
    a.i(f"v_lshlrev_b32 v{V_BT}, 16, v{V_BT}")
    bias_w = a.lds(f"ds_write_b32 v{S + 4}, v{V_BT}")

    wfrag_ld, xfrag_ld, afrag_ld, bias_ld = {}, {}, {}, {}
    act_written, act_visible = {}, {}
    rd_next = [0]
    last_mfma = {}
    pend_act_reads = list(range(24))
    tile_store_vm = {}
    all_items = items + [bias_item]
    dma_slots = set()
    groups = [] if cfg.get("nomish") else mish_groups()
    round_end = {}
    jobs = []
    urgent = []
    marks = []
    late_lds = []

    def read_w(k):
        it = Wst[k // 8]
        assert it.visible, (k, "W not visible")
        sg, off = seg(it.unit)
        buf = wbuf(k % NB)
        o = off + (k % 8) * 2048
        base, second = (V_LW1, 512) if k < NK1 else (V_LW2, 1024)
        a.lds(f"ds_read_b64_tr_b16 {vr(buf, 2)}, v{base + sg} offset:{o}")
        wfrag_ld[k] = a.lds(f"ds_read_b64_tr_b16 {vr(buf + 2, 2)}, v{base + sg} offset:{o + second}")
        if k % 8 == 7:
            it.last_read = wfrag_ld[k]
        if k < 36:
            x = Xp[k // 4]
            assert x.visible
            sg, off = seg(x.unit)
            xfrag_ld[k] = a.lds(f"ds_read_b128 {vr(V_X + 4 * k, 4)}, v{XA + 3 * (k % 4) + sg} offset:{off}")
            if k % 4 == 3:
                x.last_read = xfrag_ld[k]

    def read_bias(r):
        h = V_H + 16 * (r % 3)
        assert r < 3 or (r - 3) in act_written or cfg.get("nomish")
        def one(q):
            bias_ld[r] = a.lds(f"ds_read_b128 {vr(h + 4 * q, 4)}, v{V_BIAS} offset:{r * 256 + q * 32}")
            if r == 5 and q == 3:
                bias_item.last_read = bias_ld[r]
        for q in range(4):
            one(q) if r == 0 else late_lds.append(lambda q=q: one(q))

    def write_act(r, e):
        sg, off = seg(Act[r].unit)
        w = a.lds(f"ds_write_b128 v{V_AW + sg}, {vr(V_PK + 4 * e, 4)} offset:{off + 1024 * e}")
        if e == 1:
            act_written[r] = w

    def read_act(j):
        r, pp, e = j // 4, (j // 2) % 2, j % 2
        sg, off = seg(Act[r].unit)
        afrag_ld[j] = a.lds(f"ds_read_b128 {vr(V_X + 4 * j, 4)}, v{V_AR + sg} offset:{off + pp * 8192 + e * 1024}")
        if j % 4 == 3:
            Act[r].last_read = afrag_ld[j]

    def store_tile_ops(t):
        h = pbuf(t)
        ops = []
        for e in range(2):
            for i in range(4):
                ops.append(f"v_cvt_pk_bf16_f32 v{V_PK + 4 * e + i}, v{h + 8 * e + 2 * i}, v{h + 8 * e + 2 * i + 1}")
        ops.append(f"s_add_u32 s{S_SO}, s{S_PB}, {t * 2048}")
        for e in range(2):
            ops.append(f"v_permlane32_swap_b32 v{V_PK + 4 * e}, v{V_PK + 4 * e + 2}")
            ops.append(f"v_permlane32_swap_b32 v{V_PK + 4 * e + 1}, v{V_PK + 4 * e + 3}")

        def st(e):
            def f():
                tile_store_vm[t] = a.vm(f"buffer_store_dwordx4 {vr(V_PK + 4 * e, 4)}, v{V_L16}, s[{R_WS}:{R_WS + 3}], s{S_SO} offen offset:{1024 * e}{SC1}")
            return f
        return ops + [st(0), st(1)]

    nspin = [0]

    def check(load, vexp, V_BT=V_BT):
        nspin[0] += 1
        n = nspin[0]
        a.i(f"v_cmp_le_u32 vcc, {vexp}, v{V_BT}")
        a.i("s_cmp_eq_u64 vcc, exec")
        a.i(f"s_cbranch_scc0 L_spin{n}")
        a.label(f"L_ret{n}")
        ool.append(f"""L_spin{n}:
    s_mov_b32 s{S_CNT}, 0
L_spin{n}_l:
    s_sleep 1
    {load}
    s_add_u32 s{S_CNT}, s{S_CNT}, 1
    s_waitcnt vmcnt(0)
    v_cmp_le_u32 vcc, {vexp}, v{V_BT}
    s_cmp_eq_u64 vcc, exec
    s_cbranch_scc1 L_ret{n}
    s_cmp_lt_u32 s{S_CNT}, {SPIN_MAX}
    s_cbranch_scc1 L_spin{n}_l
    s_branch L_ret{n}""")

    LD_CNT = f"buffer_load_dword v{V_BT}, off, s[{R_M}:{R_M + 3}], 0{SC1}"
    LD_FLAG = f"buffer_load_dword v{V_BT}, v{V_FA}, s[{R_WS}:{R_WS + 3}], s{S_FL} offen{SC1}"
    LD_OTH = f"buffer_load_dword v{V_P2}, v{V_FE}, s[{R_WS}:{R_WS + 3}], 0 offen{SC1}"

    def publish(sig):
        a.i(f"v_mov_b32 v{V_DUMMY}, {sig + 1}")
        a.i("s_mov_b64 exec, 1")
        vm = a.vm(f"buffer_store_dword v{V_DUMMY}, off, s[{R_WS}:{R_WS + 3}], s{S_FW}{SC1}")
        a.i("s_mov_b64 exec, -1")
        return vm

    piece_vm = {}
    rd = lambda sig: (V_RD, V_X, V_X + 24)[sig]

    def piece_load_text(sig, s):
        return [f"s_add_u32 s{S_SO2}, s{S_RB}, {2 * s * 8 * 9 * 2048 + sig * 3 * 2048}",
                f"buffer_load_dwordx4 {vr(rd(sig) + 4 * s, 4)}, v{V_L8}, s[{R_WS}:{R_WS + 3}], s{S_SO2} offen{SC1 if sig == 2 else cfg.get('plf', SC1)}"]

    def piece_loads(sig):
        ops = []
        for s in range(6):
            def f(s=s):
                t = piece_load_text(sig, s)
                a.i(t[0])
                piece_vm[(sig, s)] = a.vm(t[1])
            ops.append(f)
        return ops

    def piece_sum(sig):
        b = V_B + 4 * sig
        acc = [b + i for i in range(4)] + [T + 4, T + 5, T + 6, V_DUMMY]
        ops = []
        for s in range(6):
            r = rd(sig) + 4 * s
            ops.append(lambda s=s: a.wait(vm=piece_vm[(sig, s)]))
            for h in range(2):
                d = acc[4 * h:4 * h + 4] if s == 0 else [T, T + 1, T + 2, T + 3]
                ops += [f"v_lshlrev_b32 v{d[0]}, 16, v{r + 2 * h}", f"v_and_b32 v{d[1]}, 0xffff0000, v{r + 2 * h}",
                        f"v_lshlrev_b32 v{d[2]}, 16, v{r + 2 * h + 1}", f"v_and_b32 v{d[3]}, 0xffff0000, v{r + 2 * h + 1}"]
                if s:
                    ops += [f"v_add_f32 v{acc[4 * h + i]}, v{acc[4 * h + i]}, v{T + i}" for i in range(4)]
        ops.append("s_nop 1")
        ops += [f"v_permlane32_swap_b32 v{acc[i]}, v{acc[i + 4]}" for i in range(4)]
        ops += [f"v_add_f32 v{acc[i]}, v{acc[i]}, v{acc[i + 4]}" for i in range(4)]
        return ops

    def last_piece_check():
        r = rd(2)
        test = [f"v_max3_u32 v{T}, v{r}, v{r + 1}, v{r + 2}"]
        test += [f"v_max3_u32 v{T}, v{T}, v{r + i}, v{r + i + 1}" for i in range(3, 23, 2)]
        test += [f"v_max_u32 v{T}, v{T}, v{r + 23}", f"v_cmp_ne_u32 vcc, -1, v{T}", "s_cmp_eq_u64 vcc, exec"]
        a.wait(vm=piece_vm[(2, 5)])
        run(test)
        a.i("s_cbranch_scc0 L_last")
        a.label("L_last_ret")
        nl = "\n    "
        ool.append(f"""L_last:
    s_mov_b32 s{S_CNT}, 0
L_last_l:
    {nl.join(x for s in range(6) for x in piece_load_text(2, s))}
    s_add_u32 s{S_CNT}, s{S_CNT}, 1
    s_waitcnt vmcnt(0)
    {nl.join(test)}
    s_cbranch_scc1 L_last_ret
    s_cmp_lt_u32 s{S_CNT}, {SPIN_MAX}
    s_cbranch_scc1 L_last_l
    s_branch L_last_ret""")

    def marker_ops():
        ops = [f"v_mov_b32 v{V_S + 4 + i}, -1" for i in range(4)]
        for i in range(6):
            def f(i=i):
                if i % 4 == 0:
                    a.i(f"s_add_u32 s{S_SO}, s{S_PB}, {6 * 2048 + 1024 * i}")
                a.vm(f"buffer_store_dwordx4 {vr(V_S + 4, 4)}, v{V_L16}, s[{R_WS}:{R_WS + 3}], s{S_SO} offen offset:{1024 * (i % 4)}{SC1}")
            ops.append(f)
        return ops

    ag_vm = {}

    def ag_loads():
        ops = [f"v_mov_b32 v{V_A + i}, 0" for i in range(12)]
        ops.append(f"s_lshl_b32 s{S_SO2}, s{S_T0}, 3")
        ops.append(f"s_add_u32 s{S_SO2}, s{S_SO2}, {WS_G}")
        ops.append(lambda: a.vm(f"buffer_load_dwordx2 {vr(V_G, 2)}, v{V_G}, s[{R_WS}:{R_WS + 3}], s{S_SO2} offen{SC1}"))
        ops.append(f"s_lshl_b32 s{S_AB}, s{S_D0}, 12")
        ops.append(f"s_lshl_b32 s3, s{S_T0}, 1")
        ops.append(f"s_add_u32 s{S_AB}, s{S_AB}, s3")
        for sig in range(3):
            for i in range(4):
                def f(sig=sig, i=i):
                    a.i(f"s_add_u32 s{S_SO2}, s{S_AB}, {WS_AT + (192 * sig + i) * 4096}")
                    ag_vm[0] = a.vm(f"buffer_load_short_d16_hi v{V_A + 4 * sig + i}, v{V_AO}, s[{R_WS}:{R_WS + 3}], s{S_SO2} offen{SC1}")
                ops.append(f)
        return ops

    def combine_ops(sig):
        b, x = V_B + 4 * sig, V_A + 4 * sig
        ops = [lambda: a.wait(vm=ag_vm[0])]
        ops += [f"v_mul_f32 v{b + i}, v{V_G + 1}, v{b + i}" for i in range(4)]
        ops += [f"v_fmac_f32 v{b + i}, v{V_G}, v{x + i}" for i in range(4)]
        ops += [f"s_mul_i32 s{S_SO2}, s{S_T0}, 1152", f"s_lshl_b32 s3, s{S_D0}, 1", f"s_add_u32 s{S_SO2}, s{S_SO2}, s3"]
        ops += [f"v_cvt_pk_bf16_f32 v{b}, v{b}, v{b + 1}", f"v_cvt_pk_bf16_f32 v{b + 1}, v{b + 2}, v{b + 3}"]
        ops.append(lambda: a.vm(f"buffer_store_dwordx2 {vr(b, 2)}, v{V_OO}, s[{R_OUT}:{R_OUT + 3}], s{S_SO2} offen offset:{384 * sig}"))
        return ops

    def run(ops):
        for op in ops:
            op() if callable(op) else a.i(op)

    poll = {}
    events = []
    if tail:
        def ev_count_load():
            poll["c"] = a.vm(LD_CNT)

        def ev_count_check():
            a.wait(vm=poll["c"])
            check(LD_CNT, str(cfg.get("nwg", 256)))

        def mk_flag_load():
            def f():
                poll["f"] = a.vm(LD_FLAG)
            return f

        def mk_flag_check(sig, k):
            def f():
                a.wait(vm=poll["f"])
                if sig == 1:
                    a.i(f"v_cmp_le_u32 vcc, 2, v{V_BT}")
                    a.i("s_cmp_eq_u64 vcc, exec")
                    a.i(f"s_cselect_b32 s{S_EARLY}, 1, 0")
                    a.i("s_cbranch_scc0 L_not_early")
                    for s in range(6):
                        run(piece_load_text(1, s))
                    a.label("L_not_early")
                    return
                check(LD_FLAG, str(sig + 1))
                ops = piece_loads(sig)
                if sig == 0:
                    ops = [x for op in ops for x in [op] + ["skip"] * cfg.get("plgap", 1)]
                jobs.append([k, 1, ops])
            return f

        def ev_oth_load():
            a.i(f"v_lshlrev_b32 v{V_FE}, 7, v0")
            a.i(f"v_add_u32 v{V_FE}, {WS_FLAG2}, v{V_FE}")
            poll["o"] = a.vm(LD_OTH)

        def mk_publish(sig):
            def f():
                a.wait(vm=tile_store_vm[3 * sig + 2])
                publish(sig)
            return f
        at = dict(cl=200, cc=260, pb0=312, fl0=342, fc0=366, sm0=400, pb1=385, fl1=402, fc1=424, ol=414)
        at.update(cfg.get("ev", {}))
        events = [(at["cl"], ev_count_load), (at["cc"], ev_count_check), (at["ol"], ev_oth_load),
                  (at["sm0"], lambda: jobs.append([at["sm0"], 6, piece_sum(0)]))]
        if cfg.get("noearly"):
            events.append((at["fc1"], lambda: a.i(f"s_mov_b32 s{S_EARLY}, 0")))
        for sig in range(2):
            events += [(at[f"pb{sig}"], mk_publish(sig)), (at[f"fl{sig}"], mk_flag_load())]
            if not (sig == 1 and cfg.get("noearly")):
                events.append((at[f"fc{sig}"], mk_flag_check(sig, at[f"fc{sig}"])))
        events.sort(key=lambda e: e[0])

    def barrier(b):
        nb = min([x for x in bars if x > b], default=NK)
        upto = min(nb - 2 + PF, NK - 1) // 8 if b >= TIGHT else (nb - 1) // 8
        need = [it for it in items if it.kind != "A" and it.need <= upto and not it.visible]
        while any(it.vm is None for it in need):
            if not dma_q:
                allocate(1)
            assert dma_q, ("item not issued in time", b)
            if cfg.get("verbose"):
                print("late DMA at barrier", b)
            dma_q.pop(0)()
        vmw = max([it.vm for it in need], default=None)
        ldw = bias_w if b == 0 else None
        for r, w in act_written.items():
            if r not in act_visible:
                ldw = max(ldw or 0, w)
        a.wait(lds=ldw, vm=vmw)
        rel = [it for it in all_items if it.last_read is not None and not it.freed and it.last_read <= a.lds_done]
        a.i("s_barrier")
        if reset["vm"] is not None and reset["vm"] <= a.vm_done:
            reset["safe"] = True
        for it in need:
            it.visible = True
        for r in act_written:
            act_visible[r] = True
        for it in rel:
            it.freed = True
            free.append(it.unit)
        if b < TIGHT:
            allocate(3)
            dma_slots.update(range(b, nb))
        else:
            allocate(0)

    last_dma = [-99]

    def dma_slot(k):
        if k < TIGHT:
            if dma_q:
                dma_q.pop(0)()
            return
        gap = 4
        for lo, hi, g in cfg.get("gaps", [[32, 44, 2], [196, 270, 3]]):
            if lo <= k < hi:
                gap = g
        due = k - last_dma[0] >= gap
        if not due or (k in bars and not cfg.get("dpost")):
            return
        if not dma_q:
            allocate(1)
        if dma_q:
            dma_q.pop(0)()
            last_dma[0] = k if k - last_dma[0] > gap + 1 else last_dma[0] + gap

    def fill(k):
        n = 1
        if k >= NK1 + 2 and groups:
            left = len([kk for kk in range(k, cfg.get("mend", 262) + 1) if (kk + 1) not in bars])
            n = -(-len(groups) // max(left, 1))
        while groups and n > 0:
            start, ops, fin = groups[0]
            if start is not None:
                if start not in round_end or k < round_end[start] + 3:
                    break
                a.dist(last_mfma[round_end[start]], 12)
            groups.pop(0)
            run(ops)
            if fin is not None:
                late_lds.append(lambda fin=fin: write_act(*fin))
            n -= 1
        J = urgent if urgent and urgent[0][0] <= k else jobs
        if J and J[0][0] <= k:
            _, budget, q = J[0]
            while q and budget > 0:
                op = q.pop(0)
                if op == "skip":
                    break
                before = a.n_ins
                op() if callable(op) else a.i(op)
                budget -= 1 if a.n_ins > before else 0
            if not q:
                J.pop(0)

    for k in range(NK):
        if k in bars:
            if k in wfrag_ld:
                a.wait(lds=wfrag_ld[k])
            barrier(k)
            if k == 0:
                stamp(2)
                read_bias(0)
        if k in STK:
            stamp(STK[k])
        while rd_next[0] < min(k + (PF if k in bars and k <= TIGHT else 1), NK) and Wst[rd_next[0] // 8].visible:
            read_w(rd_next[0]); rd_next[0] += 1
        buf = wbuf(k % NB)
        if k < NK1:
            r, ks = k // 36, k % 36
            h = V_H + 16 * (r % 3)
            w = wfrag_ld[k]
            if k < 36:
                w = max(w, xfrag_ld[k])
            if ks == 0:
                w = max(w, bias_ld[r])
            a.wait(lds=w)
            last_mfma[k] = a.i(f"v_mfma_f32_32x32x16_bf16 {vr(h, 16)}, {vr(buf, 4)}, {vr(V_X + 4 * ks, 4)}, {vr(h, 16)}")
            if ks == 35:
                round_end[r] = k
                if cfg.get("nomish"):
                    jobs.append([k + 40 if r < 5 else k + 20, 1, [lambda r=r: (write_act(r, 0), write_act(r, 1))]])
        else:
            t, u = ORDER2[(k - NK1) // 8]
            j = 8 * u + (k - NK1) % 8
            h = pbuf(t)
            a.wait(lds=max(wfrag_ld[k], afrag_ld[j]))
            if j == 0:
                assert all(tt in tile_store_vm for tt in range(t) if pbuf(tt) == h)
                assert all(r in act_written for r in range(6) if V_H + 16 * (r % 3) == h)
            cin = "0" if j == 0 else vr(h, 16)
            last_mfma[k] = a.i(f"v_mfma_f32_32x32x16_bf16 {vr(h, 16)}, {vr(buf, 4)}, {vr(V_X + 4 * j, 4)}, {cin}")
            if j == 23 and t < 8:
                urgent.append([k + 3, 4, [lambda kk=k: a.dist(last_mfma[kk], 12)] + store_tile_ops(t)])
        if (k + 1) in bars and k > TIGHT:
            continue
        fill(k)
        while rd_next[0] <= k + PF and rd_next[0] < NK and Wst[rd_next[0] // 8].visible and (rd_next[0] >= 36 or Xp[rd_next[0] // 4].visible):
            read_w(rd_next[0]); rd_next[0] += 1
        if k < NK1 and k % 36 == 28 and k // 36 < 5:
            read_bias(k // 36 + 1)
        if late_lds:
            late_lds.pop(0)()
        n = 0
        while pend_act_reads and n < (1 if k < 250 else 2):
            j = pend_act_reads[0]
            if k >= 180 + j and act_visible.get(j // 4):
                read_act(j); pend_act_reads.pop(0); n += 1
            else:
                break
        dma_slot(k)
        if tail:
            if k == 52:
                marks.extend(marker_ops())
                run([marks.pop(0) for _ in range(4)])
            if marks and k - last_dma[0] == 2:
                marks.pop(0)()
                if not marks:
                    reset["vm"] = publish(-1)
            if reset["safe"] and not reset["counted"] and k not in bars:
                reset["counted"] = True
                a.c("all flag words of this workgroup are reset: count it (wave 0)")
                a.i(f"s_cmp_lg_u32 s{S_W}, 0")
                a.i("s_cbranch_scc1 L_mlp_counted")
                a.i(f"v_mov_b32 v{V_DUMMY}, 1")
                a.i("s_mov_b64 exec, 1")
                a.i(f"buffer_atomic_add v{V_DUMMY}, off, s[{R_M}:{R_M + 3}], 0{SC1}")
                a.i("s_mov_b64 exec, -1")
                a.label("L_mlp_counted")
            while events and events[0][0] <= k:
                events.pop(0)[1]()
                jobs.sort(key=lambda x: x[0])
    assert not urgent and not groups and not dma_q and not pend_act_reads and not events
    assert reset["counted"] or not tail
    a.dist(last_mfma[NK - 1], 12)
    run(store_tile_ops(8))
    stamp(6)
    if tail:
        if cfg.get("tailbar", True):
            a.i("s_barrier")
        while jobs:
            run([op for op in jobs.pop(0)[2] if op != "skip"])
        a.i(f"s_cmp_eq_u32 s{S_EARLY}, 1")
        a.i("s_cbranch_scc1 L_was_early")
        a.wait(vm=poll["f"])
        check(LD_FLAG, "2")
        run(piece_loads(1))
        a.label("L_was_early")
        run(piece_loads(2))
        a.wait(vm=poll["o"])
        check(LD_OTH, "1", V_P2)
        run(ag_loads())
        run(piece_sum(1))
        last_piece_check()
        stamp(7)
        run(piece_sum(2))
        run(combine_ops(2))
        run(combine_ops(0))
        run(combine_ops(1))
    if stamps:
        a.wait_all_vm()
        stamp(8)
        emit_stamps(a, 9)
    if cfg.get("span"):
        a.i(f"s_cmp_lg_u32 s{S_W}, 7")
        a.i("s_cbranch_scc1 L_nospan")
        span_end(a, R_M, 2)
        a.label("L_nospan")
    a.i("s_endpgm")
    for o in ool:
        a.raw(o)
    a.label("L_mlp_end")
```

```python
KNAME = "gated_mix__ssm_conv_s4__dense_activation_mish__prompt_kernel"
R_X, R_W1, R_W2, R_WS, R_OUT, R_M = 4, 8, 12, 16, 20, 24
S_W, S_MQ, S_P, S_MT, S_SL, S_WL, S_DELTA, S_OFF, S_LOG2E, S_PB, S_SO = 28, 29, 30, 31, 32, 33, 34, 35, 36, 37, 38
S_XCD, S_J, S_PN = 39, 74, 75
S_PC = 76
S_FL, S_FW = 98, 99
S_RB, S_D0, S_T0 = 39, 74, 76
S_AB, S_CNT, S_SO2, S_EARLY = 42, 43, 44, 45
S_TK, S_TR, S_TP = 42, 51, 57
S_T2 = (34, 75, 77)
SPIN_MAX = 1 << 16
P_U, P_ARE, P_AIM, P_BRE, P_BIM, P_CRE, P_CIM, P_LDT = 40, 42, 44, 46, 48, 50, 52, 54
P_DSK, P_BX, P_W1, P_B1, P_W2, P_GW, P_OUT, P_DBG, P_WS = 56, 58, 60, 62, 64, 66, 68, 70, 72
S_STAMP = 80
WS_PART = 0
WS_AT = 16 * 12 * 8 * 9 * 2048
WS_G = WS_AT + 576 * 2048 * 2
WS_FLAG = WS_G + 2048 * 8
WS_FLAG2 = WS_FLAG + 128 * 128
WS_STAMP = WS_FLAG + 65536
WS_USED = WS_STAMP + 256 * 8 * 128


def stamp(a, k):
    a.i("s_memtime s[78:79]")
    a.i("s_memrealtime s[100:101]")
    a.wait_all_lds()
    a.i(f"s_mov_b32 s{S_STAMP + 2 * k}, s78")
    a.i(f"s_mov_b32 s{S_STAMP + 2 * k + 1}, s100")


def emit_stamps(a, n):
    a.i(f"s_lshl_b32 s3, s2, 3")
    a.i(f"s_add_u32 s3, s3, s{S_W}")
    a.i(f"s_lshl_b32 s3, s3, 7")
    a.i(f"s_add_u32 s3, s3, {WS_STAMP}")
    a.i("v_mov_b32 v0, 0")
    for k in range(n):
        a.i(f"v_mov_b32 v2, s{S_STAMP + 2 * k}")
        a.i(f"v_mov_b32 v3, s{S_STAMP + 2 * k + 1}")
        a.vm(f"buffer_store_dwordx2 v[2:3], v0, s[{R_WS}:{R_WS + 3}], s3 offen offset:{8 * k}")
        a.i("s_nop 1")
    a.wait_all_vm()


def span_begin(a):
    a.i("s_memrealtime s[100:101]")


def span_end(a, r_dbg, slot):
    a.wait_all_vm()
    a.i("s_memrealtime s[78:79]")
    a.i("s_waitcnt lgkmcnt(0)")
    a.i("s_not_b32 s100, s100")
    a.i("v_mov_b32 v2, s100")
    a.i("v_mov_b32 v3, s78")
    a.i("s_mov_b64 exec, 1")
    a.i(f"buffer_atomic_umax v2, off, s[{r_dbg}:{r_dbg + 3}], 0 offset:4 sc1")
    a.i(f"buffer_atomic_umax v3, off, s[{r_dbg}:{r_dbg + 3}], 0 offset:{4 * slot} sc1")
```

```python
import sys, json
from asmlib import *
from layout import *
import gen_mlp

def build(cfg):
    a = Asm()
    ref = open("gated_mix__ssm_conv_s4__dense_activation_mish__prompt.s.ref").read().split("\n")
    for l in ref:
        if l.startswith(";") and "@launch" not in l and "Override" not in l and "grid=ceil" not in l:
            a.raw(l)
        if not l.startswith(";"):
            break
    a.raw("; @launch grid=(256,1,1) block=(512,1,1) lds=163840")
    a.raw('.amdgcn_target "amdgcn-amd-amdhsa--gfx950"')
    a.raw(".text")
    a.raw(f".globl {KNAME}")
    a.raw(".p2align 8")
    a.raw(f".type {KNAME},@function")
    a.label(KNAME)
    if cfg.get("stamps"):
        stamp(a, 0)
    if cfg.get("span"):
        span_begin(a)
    a.i("s_cmp_ge_u32 s2, 256")
    a.i("s_cbranch_scc1 L_exit")
    a.i("s_load_dwordx2 s[40:41], s[0:1], 0")
    a.i("s_load_dwordx8 s[60:67], s[0:1], 80")
    a.i("s_load_dwordx4 s[68:71], s[0:1], 112")
    a.i("s_load_dwordx2 s[72:73], s[0:1], 128")
    a.i("v_lshrrev_b32 v1, 6, v0")
    a.i(f"s_and_b32 s{S_XCD}, s2, 7")
    a.i(f"v_readfirstlane_b32 s{S_W}, v1")
    a.i(f"s_lshr_b32 s{S_J}, s2, 3")
    a.i(f"s_cmp_lt_u32 s{S_J}, 24")
    a.i("s_cbranch_scc1 L_mlp")
    if cfg.get("conv"):
        a.i("s_branch L_conv")
    a.label("L_exit")
    a.i("s_endpgm")
    gen_mlp.gen_mlp(a, cfg)
    if cfg.get("conv"):
        import gen_conv
        gen_conv.gen_conv(a, cfg)
    a.raw('.section .rodata,"a"')
    a.raw(".p2align 6")
    a.raw(f""".amdhsa_kernel {KNAME}
  .amdhsa_next_free_vgpr 256
  .amdhsa_next_free_sgpr 102
  .amdhsa_accum_offset 256
  .amdhsa_group_segment_fixed_size 0
  .amdhsa_kernarg_size 136
  .amdhsa_user_sgpr_count 2
  .amdhsa_user_sgpr_kernarg_segment_ptr 1
  .amdhsa_system_sgpr_workgroup_id_x 1
.end_amdhsa_kernel""")
    return a.text()

if __name__ == "__main__":
    out = sys.argv[1]
    cfg = json.loads(sys.argv[2]) if len(sys.argv) > 2 else {}
    open(out, "w").write(build(cfg))
```
